```python
import torch

def _softmax(x, axis=-1):
    return torch.softmax(x, dim=axis)
def _gelu(x):
    return torch.nn.functional.gelu(x, approximate="tanh")
def _silu(x):
    return torch.nn.functional.silu(x)
def _sigmoid(x):
    return torch.sigmoid(x)
def _layernorm(x, axis=-1, eps=1e-5):
    m = x.mean(dim=axis, keepdim=True)
    v = x.var(dim=axis, keepdim=True, unbiased=False)
    return (x - m) / torch.sqrt(v + eps)
def _scatter_add(tgt, idx, src, axis=0):
    return tgt.clone().index_add_(axis, idx, src)
def _segment_sum(src, seg, n):
    out = torch.zeros((n,) + src.shape[1:], dtype=src.dtype)
    return out.index_add_(0, seg, src)
def _pad(x, pw):
    flat = tuple(v for pair in reversed(pw) for v in pair)
    return torch.nn.functional.pad(x, flat)

kernel_name = 'gated_mix__ssm_conv_s4__dense_activation_silu__prompt'

def setup_inputs():

    _w = (lambda a: (lambda t: t.to(torch.bfloat16) if t.is_floating_point() else t)(torch.as_tensor(a)))
    def _A_setup():
        B, L, D, N = 1, 2048, 512, 128
        A_re = -(lambda _x: torch.exp(torch.as_tensor(_x)))((lambda *s: torch.randn(*s, dtype=torch.bfloat16) * 6.4)(D, N))
        A_im = torch.pi * (lambda *s: torch.randn(*s, dtype=torch.bfloat16) * 0.05)(D, N)
        B_re = (lambda *s: torch.randn(*s, dtype=torch.bfloat16) * 0.2)(D, N)
        B_im = (lambda *s: torch.randn(*s, dtype=torch.bfloat16) * 0.2)(D, N)
        C_re = (lambda *s: torch.randn(*s, dtype=torch.bfloat16) * 0.2)(D, N)
        C_im = (lambda *s: torch.randn(*s, dtype=torch.bfloat16) * 0.2)(D, N)
        log_dt = (lambda *s: torch.randn(*s, dtype=torch.bfloat16) * 0.05)(D) * 0.5 - 4.0
        Dskip = (lambda *s: torch.randn(*s, dtype=torch.bfloat16) * 0.05)(D)
        return {
            "u": _w((lambda *s: torch.randn(*s, dtype=torch.bfloat16) * 0.05)(B, L, D)),
            "A_re": _w(A_re),
            "A_im": _w(A_im),
            "B_re": _w(B_re),
            "B_im": _w(B_im),
            "C_re": _w(C_re),
            "C_im": _w(C_im),
            "log_dt": _w(log_dt),
            "Dskip": _w(Dskip),
        }
    _A_in = _A_setup()

    def _B_setup():
        B, S, D, F = 1, 2048, 512, 1792
        return {
            "x": _w((lambda *s: torch.randn(*s, dtype=torch.bfloat16) * 0.05)(B, S, D)),
            "w1": _w((lambda *s: torch.randn(*s, dtype=torch.bfloat16) * 6.4)(D, F) * (D ** -0.5)),
            "w2": _w((lambda *s: torch.randn(*s, dtype=torch.bfloat16) * 0.2)(F, D) * (F ** -0.5)),
        }
    _B_in = _B_setup()

    return {
        "A_u": _A_in["u"],
        "A_A_re": _A_in["A_re"],
        "A_A_im": _A_in["A_im"],
        "A_B_re": _A_in["B_re"],
        "A_B_im": _A_in["B_im"],
        "A_C_re": _A_in["C_re"],
        "A_C_im": _A_in["C_im"],
        "A_log_dt": _A_in["log_dt"],
        "A_Dskip": _A_in["Dskip"],
        "B_x": _B_in["x"],
        "B_w1": _B_in["w1"],
        "B_w2": _B_in["w2"],
        "gate_w": _w((lambda *s: torch.randn(*s, dtype=torch.bfloat16) * 0.05)(512) * 16.0),
    }

def reference(A_u, A_A_re, A_A_im, A_B_re, A_B_im, A_C_re, A_C_im, A_log_dt, A_Dskip, B_x, B_w1, B_w2, gate_w):
    def _A_ref(u, A_re, A_im, B_re, B_im, C_re, C_im, log_dt, Dskip):
        Bsz, L, D = u.shape
        dt = torch.exp(log_dt)[:, None]
        A = A_re + 1j * A_im
        Bc = B_re + 1j * B_im
        Cc = C_re + 1j * C_im
        logdA = dt * A
        dB = dt * Bc
        l = (lambda x, dt: x.to(dt))(torch.arange(L), A_re.dtype)
        P = torch.exp(logdA[:, :, None] * l[None, None, :])
        K = torch.einsum("dn,dnl,dn->dl", Cc, P, dB).real
        L2 = 2 * L
        Kp = _pad(K, ((0, 0), (0, L)))
        up = (lambda x, *d: x.permute(*d))(u, 0, 2, 1)
        up = _pad(up, ((0, 0), (0, 0), (0, L)))
        Kf = (lambda x, axes=(-2,-1): torch.fft.rfft2(x.float(), dim=axes))(Kp[:, None, :], axes=(-2, -1))
        Uf = (lambda x, axes=(-2,-1): torch.fft.rfft2(x.float(), dim=axes))(up[:, :, None, :], axes=(-2, -1))
        Yf = Uf * Kf[None, :, :, :]
        y = (lambda x, s, axes=(-2,-1): torch.fft.irfft2(x, s=s, dim=axes).to(torch.bfloat16))(Yf, (1, L2), axes=(-2, -1))[:, :, 0, :L]
        y = (lambda x, *d: x.permute(*d))(y, 0, 2, 1) + u * Dskip[None, None, :]
        return y

    def _B_ref(x, w1, w2):
        h = torch.einsum("bsd,df->bsf", x, w1)
        h = _silu(h)
        out = torch.einsum("bsf,fd->bsd", h, w2)
        return out

    x = A_u
    g = _sigmoid((x * gate_w).sum(-1, keepdims=True))
    a = _A_ref(x, A_A_re, A_A_im, A_B_re, A_B_im, A_C_re, A_C_im, A_log_dt, A_Dskip)
    b = _B_ref(x, B_w1, B_w2)
    return g * a + (1 - g) * b
```

```python
class Asm:
    def __init__(self):
        self.lines = []
        self.uid = 0
    def __call__(self, s):
        for l in s.strip("\n").split("\n"):
            self.lines.append(l.strip() if not l.strip().endswith(":") else l.strip())
    def c(self, s):
        self.lines.append("; " + s)
    def label(self, base):
        self.uid += 1
        return f"L_{base}_{self.uid}"
    def text(self):
        return "\n".join(self.lines) + "\n"

def v(a, n=1):
    return f"v{a}" if n == 1 else f"v[{a}:{a+n-1}]"
def a_(a, n=1):
    return f"a{a}" if n == 1 else f"a[{a}:{a+n-1}]"
def s(a, n=1):
    return f"s{a}" if n == 1 else f"s[{a}:{a+n-1}]"

def srd(A, d, base_lo, base_hi, nbytes):
    A(f"s_mov_b32 s{d}, s{base_lo}")
    A(f"s_and_b32 s{d+1}, s{base_hi}, 0xffff")
    A(f"s_mov_b32 s{d+2}, {nbytes}")
    A(f"s_mov_b32 s{d+3}, 0x20000")

def srd_off(A, d, base_lo, base_hi, off_sgpr_or_imm, nbytes):
    A(f"s_add_u32 s{d}, s{base_lo}, {off_sgpr_or_imm}")
    A(f"s_addc_u32 s{d+1}, s{base_hi}, 0")
    A(f"s_and_b32 s{d+1}, s{d+1}, 0xffff")
    A(f"s_mov_b32 s{d+2}, {nbytes}")
    A(f"s_mov_b32 s{d+3}, 0x20000")

def kernel_header(A, name):
    A(f".globl {name}")
    A(".p2align 8")
    A(f".type {name},@function")
    A(f"{name}:")

def kernel_desc(A, name, vgpr, accum, sgpr=102):
    A(".p2align 6")
    A(f".amdhsa_kernel {name}")
    A(f"  .amdhsa_next_free_vgpr {vgpr}")
    A(f"  .amdhsa_next_free_sgpr {sgpr}")
    A(f"  .amdhsa_accum_offset {accum}")
    A("  .amdhsa_group_segment_fixed_size 0")
    A("  .amdhsa_kernarg_size 128")
    A("  .amdhsa_user_sgpr_count 2")
    A("  .amdhsa_user_sgpr_kernarg_segment_ptr 1")
    A("  .amdhsa_system_sgpr_workgroup_id_x 1")
    A("  .amdhsa_float_denorm_mode_32 3")
    A("  .amdhsa_float_denorm_mode_16_64 3")
    A(".end_amdhsa_kernel")

WS_H   = 0x0000000
WS_W2F = 0x0800000
WS_AT  = 0x0A00000
WS_G   = 0x0C00000
KA = dict(u=0, A_re=8, A_im=16, B_re=24, B_im=32, C_re=40, C_im=48, log_dt=56, Dskip=64, x=72, w1=80, w2=88, gate_w=96, out=104, dbg=112, ws=120)

WS_STAMP = 0x3000000
def stamp(A, k, real=False):
    if not getattr(A, "stamps", False): return
    A(("s_memrealtime" if real else "s_memtime") + f" s[{64+2*k}:{65+2*k}]")
def stamp_flush(A, n, ws_lo, ws_hi, wg="s2", wave_sgpr=None, slot_mul=4):
    if not getattr(A, "stamps", False): return
    A("s_waitcnt lgkmcnt(0)")
    A(f"s_lshl_b32 s90, {wg}, 8")
    if wave_sgpr is not None:
        A(f"s_lshl_b32 s91, {wave_sgpr}, 6")
        A("s_add_u32 s90, s90, s91")
    A(f"s_add_u32 s90, s90, {WS_STAMP}")
    A(f"s_add_u32 s92, {ws_lo}, s90")
    A(f"s_addc_u32 s93, {ws_hi}, 0")
    A("s_and_b32 s93, s93, 0xffff")
    A("s_mov_b32 s94, 64")
    A("s_mov_b32 s95, 0x20000")
    A("s_mov_b64 s[88:89], exec")
    A("s_mov_b64 exec, 1")
    A("v_mov_b32 v1, 0")
    for k in range(n):
        A(f"v_mov_b32 v0, s{64+2*k}")
        A(f"buffer_store_dword v0, v1, s[92:95], 0 offen offset:{4*k}")
        A("s_nop 1")
    A("s_getreg_b32 s91, hwreg(HW_REG_HW_ID)")
    A("v_mov_b32 v0, s91")
    A("buffer_store_dword v0, v1, s[92:95], 0 offen offset:56")
    A("s_nop 1")
    A("s_getreg_b32 s91, hwreg(HW_REG_XCC_ID)")
    A("v_mov_b32 v0, s91")
    A("buffer_store_dword v0, v1, s[92:95], 0 offen offset:60")
    A("s_mov_b64 exec, s[88:89]")
```

```python
from asmlib import *

LOG2E = 0x3fb8aa3b

def gen_gemm1(A, endlabel):
    A.c("==== GEMM1 role ====")
    A(f"s_load_dwordx2 s[4:5], s[0:1], {KA['ws']}")
    A(f"s_load_dwordx2 s[6:7], s[0:1], {KA['u']}")
    A(f"s_load_dwordx2 s[8:9], s[0:1], {KA['w1']}")
    A("v_lshrrev_b32 v1, 6, v0")
    A("v_and_b32 v2, 63, v0")
    A("s_and_b32 s10, s2, 7")
    A("v_readfirstlane_b32 s11, v1")
    A("s_lshr_b32 s12, s2, 3")
    A("s_and_b32 s13, s12, 1")
    A("s_lshl_b32 s10, s10, 1")
    A("s_add_u32 s10, s10, s13")
    A("s_lshr_b32 s12, s12, 1")
    A("v_lshrrev_b32 v3, 3, v2")
    A("v_and_b32 v4, 7, v2")
    A("v_xor_b32 v4, v4, v3")
    A("v_lshlrev_b32 v4, 4, v4")
    A("v_lshlrev_b32 v3, 10, v3")
    A("v_add_u32 v3, v3, v4")
    A("v_lshrrev_b32 v5, 4, v2")
    A("v_and_b32 v6, 15, v2")
    A("v_lshrrev_b32 v7, 1, v6")
    A("v_xor_b32 v7, v7, v5")
    A("v_lshlrev_b32 v7, 1, v7")
    A("v_and_b32 v6, 1, v6")
    A("v_or_b32 v7, v7, v6")
    A("v_lshlrev_b32 v7, 4, v7")
    A("v_mul_u32_u24 v5, 3584, v5")
    A("v_add_u32 v4, v5, v7")
    A("v_xor_b32 v7, 128, v7")
    A("v_add_u32 v5, v5, v7")
    A("s_lshl_b32 s14, s11, 15")
    for q in range(4):
        A(f"s_add_u32 s{40+q}, s14, {q*(8192-1024)}")
    A("s_mul_i32 s14, s11, %d" % (16*3584))
    for q in range(4):
        A(f"s_add_u32 s{44+q}, s14, {q*(4*3584-1024)}")
    A("s_lshl_b32 s15, s11, 12")
    A("s_lshl_b32 s16, s10, 17")
    A("s_lshl_b32 s17, s12, 8")
    A(f"s_sub_u32 s18, {512*3584}, s17")
    A("s_waitcnt lgkmcnt(0)")
    srd_off(A, 20, 6, 7, "s16", 128*1024)
    A("s_add_u32 s24, s8, s17")
    A("s_addc_u32 s25, s9, 0")
    A("s_and_b32 s25, s25, 0xffff")
    A("s_mov_b32 s26, s18")
    A("s_mov_b32 s27, 0x20000")
    def issue2(n):
        slot = (n % 5) * 16384
        A(f"s_add_u32 m0, s15, {slot}")
        A("s_nop 0")
        if n % 2 == 0:
            for q in range(4):
                A(f"buffer_load_dwordx4 v3, s[20:23], s{40+q} offen offset:{q*1024} lds")
            for q in range(4):
                A(f"s_add_u32 s{40+q}, s{40+q}, 128")
        else:
            for q in range(4):
                A(f"buffer_load_dwordx4 {'v4' if q < 2 else 'v5'}, s[24:27], s{44+q} offen offset:{q*1024} lds")
            for q in range(4):
                A(f"s_add_u32 s{44+q}, s{44+q}, {64*3584}")
    for n in range(5): issue2(n)
    A("s_and_b32 s19, s11, 1")
    A("s_lshr_b32 s28, s11, 1")
    A("v_and_b32 v6, 15, v2")
    A("v_lshrrev_b32 v7, 4, v2")
    A("v_and_b32 v8, 7, v6")
    A("v_xor_b32 v8, v8, v7")
    A("v_lshlrev_b32 v8, 4, v8")
    A("v_lshlrev_b32 v9, 7, v6")
    A("v_add_u32 v8, v8, v9")
    A("s_lshl_b32 s29, s19, 13")
    A("v_add_u32 v8, s29, v8")
    A("v_xor_b32 v9, 64, v8")
    A("v_lshrrev_b32 v10, 2, v2")
    A("v_and_b32 v10, 3, v10")
    A("v_lshlrev_b32 v11, 3, v7")
    A("v_add_u32 v11, v11, v10")
    A("v_lshlrev_b32 v11, 8, v11")
    A("v_and_b32 v12, 1, v7")
    A("v_lshlrev_b32 v12, 2, v12")
    A("v_or_b32 v12, v12, v10")
    A("s_lshl_b32 s29, s28, 2")
    A("v_xor_b32 v12, s29, v12")
    A("v_lshlrev_b32 v12, 5, v12")
    A("v_add_u32 v11, v11, v12")
    A("v_and_b32 v12, 3, v2")
    A("v_lshlrev_b32 v12, 3, v12")
    A("v_add_u32 v10, v11, v12")
    for t in range(1, 4):
        A(f"v_xor_b32 v{10+t}, {t*32}, v10")
    ACC = 128
    for i in range(64): A(f"v_mov_b32 v{ACC+i}, 0")
    FR = 32
    T = 16
    def reads(st, j, fset):
        xs = ((2*st) % 5) * 16384; wsl = ((2*st+1) % 5) * 16384
        base = FR + fset*32
        xa = 8 + j
        xo, wo = xs, wsl + j*8192
        xr, wr = f"v{xa}", None
        if xo + 3*2048 + 2048 > 65535:
            A(f"v_add_u32 v{T}, {xo}, v{xa}"); xr = f"v{T}"; xo = 0
        if wo + 1024 + 8192 > 65535 + 8192 - 0 or wo + 1024 > 65535:
            for t in range(4): A(f"v_add_u32 v{T+1+t}, {wo}, v{10+t}")
            wregs = [f"v{T+1+t}" for t in range(4)]; wo = 0
        else:
            wregs = [f"v{10+t}" for t in range(4)]
        for t in range(4):
            A(f"ds_read_b64_tr_b16 {v(base+t*4,2)}, {wregs[t]} offset:{wo}")
            A(f"ds_read_b64_tr_b16 {v(base+t*4+2,2)}, {wregs[t]} offset:{wo+1024}")
            A(f"ds_read_b128 {v(base+16+t*4,4)}, {xr} offset:{xo+t*2048}")
    def mfmas(fset):
        base = FR + fset*32
        for ft in range(4):
            for lt in range(4):
                acc = ACC + (ft*4+lt)*4
                A(f"v_mfma_f32_16x16x32_bf16 {v(acc,4)}, {v(base+ft*4,4)}, {v(base+16+lt*4,4)}, {v(acc,4)}")
    stamp(A, 2)
    for st in range(8):
        A(f"s_waitcnt vmcnt({12 if st == 0 else (4 if 2*st+2 < 16 else 0)})")
        A("s_barrier")
        if st == 0: stamp(A, 3)
        if st >= 1:
            for n in (2*st+3, 2*st+4):
                if n < 16: issue2(n)
        reads(st, 0, 0)
        reads(st, 1, 1)
        A("s_waitcnt lgkmcnt(12)")
        mfmas(0)
        A("s_waitcnt lgkmcnt(0)")
        mfmas(1)
    stamp(A, 4)
    A("s_nop 7")
    A("s_nop 1")
    A(f"s_mov_b32 s30, 0x{(LOG2E | 0x80000000):x}")
    A("s_mov_b32 s31, 0xffff0000")
    A("s_lshl_b32 s32, s10, 1")
    A("s_add_u32 s32, s32, s19")
    A("s_mul_i32 s32, s32, 56")
    A("s_lshl_b32 s33, s12, 2")
    A("s_add_u32 s32, s32, s33")
    A("s_lshl_b32 s33, s28, 1")
    A("s_add_u32 s32, s32, s33")
    A("s_lshl_b32 s32, s32, 12")
    srd_off(A, 36, 4, 5, "s32", 8192)
    A("v_lshlrev_b32 v3, 4, v2")
    A("s_mov_b32 s34, 4096")
    for p in range(2):
        for lt in range(4):
            o = 32 + (p*4+lt)*4
            for half in range(2):
                acc = ACC + ((2*p+half)*4 + lt)*4
                for pr in range(2):
                    x0, x1 = acc+2*pr, acc+2*pr+1
                    A(f"v_cvt_pk_bf16_f32 v16, v{x0}, v{x1}")
                    A(f"v_lshlrev_b32 v{x0}, 16, v16")
                    A(f"v_and_b32 v{x1}, s31, v16")
                    A(f"v_mul_f32 v18, s30, v{x0}")
                    A(f"v_mul_f32 v19, s30, v{x1}")
                    A(f"v_exp_f32 v18, v18")
                    A(f"v_exp_f32 v19, v19")
                    A("s_nop 0")
                    A(f"v_add_f32 v18, 1.0, v18")
                    A(f"v_add_f32 v19, 1.0, v19")
                    A(f"v_rcp_f32 v18, v18")
                    A(f"v_rcp_f32 v19, v19")
                    A("s_nop 0")
                    A(f"v_mul_f32 v18, v18, v{x0}")
                    A(f"v_mul_f32 v19, v19, v{x1}")
                    A(f"v_cvt_pk_bf16_f32 v{o+half*2+pr}, v18, v19")
            A(f"buffer_store_dwordx4 {v(o,4)}, v3, s[36:39], {'0' if p == 0 else 's34'} offen offset:{lt*1024}")
    stamp(A, 5)
    A(f"s_branch {endlabel}")
```

```python
from asmlib import *
LOG2E = 0x3fb8aa3b

def gen_side(A, endlabel):
    A.c("==== side role ====")
    A(f"s_load_dwordx2 s[4:5], s[0:1], {KA['ws']}")
    A(f"s_load_dwordx2 s[6:7], s[0:1], {KA['u']}")
    A(f"s_load_dwordx2 s[8:9], s[0:1], {KA['w2']}")
    A(f"s_load_dwordx2 s[34:35], s[0:1], {KA['gate_w']}")
    A("v_lshrrev_b32 v1, 6, v0")
    A("v_and_b32 v2, 63, v0")
    A("s_sub_u32 s10, s2, 224")
    A("v_readfirstlane_b32 s11, v1")
    A("v_lshlrev_b32 v3, 4, v2")
    A("s_waitcnt lgkmcnt(0)")
    A("s_lshl_b32 s12, s10, 6")
    A("s_lshl_b32 s13, s11, 4")
    A("s_add_u32 s12, s12, s13")
    A("s_lshl_b32 s13, s12, 10")
    srd_off(A, 20, 6, 7, "s13", 16*1024)
    srd(A, 24, 34, 35, 1024)
    A("buffer_load_dwordx4 v[8:11], v3, s[24:27], 0 offen")
    for n in range(16):
        A(f"s_mov_b32 s14, {n*1024}")
        A(f"buffer_load_dwordx4 {v(32+4*n,4)}, v3, s[20:23], s14 offen")
    now2 = A.label("now2")
    A("s_cmp_ge_u32 s10, 28")
    A(f"s_cbranch_scc1 {now2}")
    srd(A, 28, 8, 9, 1792*1024)
    srd_off(A, 36, 4, 5, WS_W2F, 1792*1024)
    A("v_lshrrev_b32 v4, 3, v2")
    A("v_lshlrev_b32 v4, 10, v4")
    A("v_and_b32 v5, 7, v2")
    A("v_lshlrev_b32 v5, 4, v5")
    A("v_add_u32 v4, v4, v5")
    A("s_lshl_b32 s15, s10, 4")
    A("s_lshl_b32 s16, s11, 2")
    A("s_add_u32 s15, s15, s16")
    A("s_lshl_b32 s17, s11, 14")
    for n in range(4):
        A(f"s_add_u32 s16, s15, {n}")
        A("s_and_b32 s18, s16, 7")
        A("s_lshr_b32 s19, s16, 3")
        A("s_lshl_b32 s40, s19, 15")
        A("s_lshl_b32 s41, s18, 7")
        A("s_add_u32 s40, s40, s41")
        A("s_mul_i32 s41, s18, 56")
        A("s_add_u32 s41, s41, s19")
        A(f"s_lshl_b32 s{44+n}, s41, 12")
        A(f"s_add_u32 m0, s17, {n*4096}")
        for q in range(4):
            A(f"s_add_u32 s41, s40, {q*(8192-1024)}")
            A(f"buffer_load_dwordx4 v4, s[28:31], s41 offen offset:{q*1024} lds")
    A("v_lshrrev_b32 v5, 4, v2")
    A("v_lshlrev_b32 v5, 2, v5")
    A("v_lshrrev_b32 v6, 2, v2")
    A("v_and_b32 v6, 3, v6")
    A("v_add_u32 v5, v5, v6")
    A("v_lshlrev_b32 v5, 7, v5")
    A("v_and_b32 v6, 3, v2")
    A("v_lshlrev_b32 v6, 4, v6")
    A("v_add_u32 v5, v5, v6")
    A("v_add_u32 v5, s17, v5")
    A("s_waitcnt vmcnt(0)")
    for n in range(4):
        for dt in range(4):
            o = n*4096 + 64*(dt >> 1) + 8*(dt & 1)
            A(f"ds_read_b64_tr_b16 {v(96+(n*4+dt)*4,2)}, v5 offset:{o}")
            A(f"ds_read_b64_tr_b16 {v(96+(n*4+dt)*4+2,2)}, v5 offset:{o+2048}")
        if n == 1: A("s_waitcnt lgkmcnt(0)")
    A("s_waitcnt lgkmcnt(0)")
    for n in range(4):
        for dt in range(4):
            A(f"buffer_store_dwordx4 {v(96+(n*4+dt)*4,4)}, v3, s[36:39], s{44+n} offen offset:{dt*1024}")
    A(f"{now2}:")
    A("s_waitcnt vmcnt(16)" if False else "s_waitcnt vmcnt(0)")
    A("s_mov_b32 s31, 0xffff0000")
    for k in range(4):
        A(f"v_lshlrev_b32 v{16+2*k}, 16, v{8+k}")
        A(f"v_and_b32 v{17+2*k}, s31, v{8+k}")
    for n in range(16):
        src = 32 + 4*n
        for k in range(4):
            A(f"v_lshlrev_b32 v24, 16, v{src+k}")
            A(f"v_and_b32 v25, s31, v{src+k}")
            A(f"v_mul_f32 v24, v24, v{16+2*k}")
            A(f"v_mul_f32 v25, v25, v{17+2*k}")
            A(f"v_cvt_pk_bf16_f32 v26, v24, v25")
            A(f"v_lshlrev_b32 v24, 16, v26")
            A(f"v_and_b32 v25, s31, v26")
            if k == 0:
                A(f"v_add_f32 v{160+n}, v24, v25")
            else:
                A(f"v_add_f32 v24, v24, v25")
                A(f"v_add_f32 v{160+n}, v{160+n}, v24")
    for sh in (1, 2, 4, 8):
        for n in range(16):
            A(f"v_add_f32_dpp v{160+n}, v{160+n}, v{160+n} row_shr:{sh} row_mask:0xf bank_mask:0xf bound_ctrl:0")
    for n in range(16):
        A(f"v_add_f32_dpp v{160+n}, v{160+n}, v{160+n} row_bcast:15 row_mask:0xa bank_mask:0xf")
    for n in range(16):
        A(f"v_add_f32_dpp v{160+n}, v{160+n}, v{160+n} row_bcast:31 row_mask:0xc bank_mask:0xf")
    A("v_mov_b32 v24, 0")
    A("s_nop 1")
    for n in range(16):
        A(f"v_readlane_b32 s{44+(n%4)}, v{160+n}, 63")
        A("s_nop 3")
        A(f"v_writelane_b32 v24, s{44+(n%4)}, {n}")
    A("v_cvt_pk_bf16_f32 v24, v24, v24")
    A("v_and_b32 v24, s31, v24")
    A(f"v_mul_f32 v24, 0x{(LOG2E | 0x80000000):x}, v24")
    A("v_exp_f32 v24, v24")
    A("s_nop 0")
    A("v_add_f32 v24, 1.0, v24")
    A("v_rcp_f32 v24, v24")
    A("s_nop 0")
    A("v_cvt_pk_bf16_f32 v24, v24, v24")
    A("v_and_b32 v24, s31, v24")
    A("s_lshl_b32 s13, s12, 2")
    A(f"s_add_u32 s13, s13, {WS_G}")
    srd_off(A, 20, 4, 5, "s13", 64)
    A("v_lshlrev_b32 v25, 2, v2")
    A("buffer_store_dword v24, v25, s[20:23], 0 offen")
    A(f"s_branch {endlabel}")
```

```python
from asmlib import *
LOG2E = 0x3fb8aa3b
INV2PI = 0x3e22f983
UB = 512; CS = 4160; UCH = 4*CS
KB = 34048; KCH = 4608
FB = 43264; FCH = 4224
PT = 51712
RED = 59904
F2K = 76288

def cexp(A, dre, dim, alpha, beta, t, tmp):
    A(f"v_mul_f32 v{tmp}, {t}, v{alpha}")
    A(f"v_mul_f32 v{tmp+1}, {t}, v{beta}")
    A(f"v_exp_f32 v{tmp}, v{tmp}")
    A(f"v_fract_f32 v{tmp+1}, v{tmp+1}")
    A(f"v_cos_f32 v{dre}, v{tmp+1}")
    A(f"v_sin_f32 v{dim}, v{tmp+1}")
    A("s_nop 0")
    A(f"v_mul_f32 v{dre}, v{dre}, v{tmp}")
    A(f"v_mul_f32 v{dim}, v{dim}, v{tmp}")

def cmul(A, dre, dim, are, aim, bre, bim, tmp):
    A(f"v_mul_f32 v{tmp}, v{aim}, v{bim}")
    A(f"v_mul_f32 v{tmp+1}, v{aim}, v{bre}")
    A(f"v_fma_f32 v{dre}, v{are}, v{bre}, -v{tmp}")
    A(f"v_fma_f32 v{dim}, v{are}, v{bim}, v{tmp+1}")

def gen_ssm(A, endlabel):
    A.c("==== SSM role ====")
    for i, n in enumerate(["ws", "u", "A_re", "A_im", "B_re", "B_im", "C_re", "C_im", "log_dt", "Dskip"]):
        A(f"s_load_dwordx2 s[{4+2*i}:{5+2*i}], s[0:1], {KA[n]}")
    A("v_lshrrev_b32 v1, 6, v0")
    A("v_and_b32 v2, 63, v0")
    A("s_sub_u32 s24, s2, 256")
    A("v_readfirstlane_b32 s25, v1")
    A("s_and_b32 s26, s24, 7")
    A("s_lshr_b32 s27, s24, 3")
    A("s_lshl_b32 s26, s26, 6")
    A("s_lshl_b32 s27, s27, 1")
    A("s_add_u32 s26, s26, s27")
    A("s_lshr_b32 s27, s25, 1")
    A("s_and_b32 s28, s25, 1")
    A("s_add_u32 s29, s26, s27")
    A("s_lshl_b32 s30, s29, 8")
    A("s_lshl_b32 s31, s28, 7")
    A("s_add_u32 s30, s30, s31")
    A("v_lshlrev_b32 v3, 1, v2")
    A("v_add_u32 v3, s30, v3")
    A("s_lshl_b32 s31, s26, 1")
    A("s_waitcnt lgkmcnt(0)")
    A("s_add_u32 s20, s20, s31\ns_addc_u32 s21, s21, 0")
    A("s_add_u32 s22, s22, s31\ns_addc_u32 s23, s23, 0")
    A("s_load_dword s32, s[20:21], 0")
    A("s_load_dword s33, s[22:23], 0")
    for i in range(6):
        srd(A, 36, 8+2*i, 9+2*i, 512*128*2)
        A(f"buffer_load_ushort v{8+i}, v3, s[36:39], 0 offen")
    A("s_add_u32 s40, s6, s31")
    A("s_addc_u32 s41, s7, 0")
    A("s_and_b32 s41, s41, 0xffff")
    A(f"s_sub_u32 s42, {2048*1024}, s31")
    A("s_mov_b32 s43, 0x20000")
    A("v_lshlrev_b32 v4, 13, v0")
    A("v_add_u32 v5, 4096, v4")
    W = 200
    for r in range(8):
        A(f"buffer_load_dword v{W+3+r}, {'v4' if r < 4 else 'v5'}, s[40:43], 0 offen offset:{(r%4)*1024}")
    A("v_subrev_u32 v6, 3072, v4")
    A("s_mov_b64 s[44:45], exec")
    A("s_mov_b64 exec, 1")
    for r in range(3):
        A(f"buffer_load_dword v{W+r}, v6, s[40:43], 0 offen offset:{r*1024}")
    A("s_mov_b64 exec, s[44:45]")
    stamp(A, 2)
    GA = 216
    A("v_and_b32 v6, 127, v0")
    A("v_lshlrev_b32 v6, 4, v6")
    A("v_lshrrev_b32 v7, 7, v0")
    A(f"v_mul_u32_u24 v7, {FCH}, v7")
    A(f"v_add_u32 v7, {FB}, v7")
    A("s_mov_b32 s46, 0xffff0000")
    for e in range(16):
        r = GA + e
        A(f"v_add_u32 v{r}, {e}, v6")
        A(f"v_cvt_f32_u32 v{r}, v{r}")
        A(f"v_cvt_pk_bf16_f32 v{r}, v{r}, v{r}")
        A(f"v_and_b32 v{r}, s46, v{r}")
        A(f"v_cvt_u32_f32 v{r}, v{r}")
        A(f"v_lshl_add_u32 v{r}, v{r}, 1, v7")
    A("v_mov_b32 v232, 0\nv_mov_b32 v233, 0\nv_mov_b32 v234, 0\nv_mov_b32 v235, 0")
    A("v_lshrrev_b32 v14, 5, v0")
    A(f"v_mul_u32_u24 v14, {KCH}, v14")
    A("v_and_b32 v15, 31, v0")
    A("v_lshlrev_b32 v15, 4, v15")
    A("v_add_u32 v14, v14, v15")
    A(f"v_add_u32 v14, {KB}, v14")
    A("v_subrev_u32 v15, 64, v0")
    A("v_lshrrev_b32 v16, 3, v15")
    A(f"v_mul_u32_u24 v16, {UCH}, v16")
    A("v_lshrrev_b32 v17, 1, v15")
    A("v_and_b32 v17, 3, v17")
    A(f"v_mul_u32_u24 v17, {CS}, v17")
    A("v_add_u32 v16, v16, v17")
    A("v_and_b32 v17, 1, v15")
    A("v_lshlrev_b32 v17, 4, v17")
    A("v_add_u32 v16, v16, v17")
    A(f"v_add_u32 v16, {UB+4096}, v16")
    A("v_cmp_gt_u32 vcc, 64, v0")
    A("s_nop 1")
    A("v_cndmask_b32 v14, v16, v14, vcc")
    A("v_cmp_gt_u32 vcc, 80, v0")
    A("s_and_saveexec_b64 s[44:45], vcc")
    pz = A.label("pz")
    A(f"s_cbranch_execz {pz}")
    A("ds_write_b128 v14, v[232:235]")
    A(f"{pz}:")
    A("s_mov_b64 exec, s[44:45]")
    A("s_waitcnt lgkmcnt(0)")
    A("s_lshl_b32 s47, s27, 4")
    A("s_lshr_b32 s32, s32, s47")
    A("s_lshl_b32 s32, s32, 16")
    A("s_lshr_b32 s33, s33, s47")
    A("s_lshl_b32 s33, s33, 16")
    A("v_mov_b32 v14, s32")
    A(f"v_mul_f32 v14, 0x{LOG2E:x}, v14")
    A("v_exp_f32 v14, v14")
    A("s_nop 0")
    A("v_cvt_pk_bf16_f32 v14, v14, v14")
    A("v_and_b32 v14, s46, v14")
    A("s_waitcnt vmcnt(11)")
    stamp(A, 3)
    for i in range(6): A(f"v_lshlrev_b32 v{8+i}, 16, v{8+i}")
    A("v_mul_f32 v20, v14, v8")
    A("v_mul_f32 v21, v14, v9")
    A(f"v_mul_f32 v20, 0x{LOG2E:x}, v20")
    A(f"v_mul_f32 v21, 0x{INV2PI:x}, v21")
    A("v_mul_f32 v10, v14, v10")
    A("v_mul_f32 v11, v14, v11")
    cmul(A, 22, 23, 12, 13, 10, 11, 16)
    A("s_mov_b32 s48, 0x44000000")
    A("s_mov_b32 s49, 0x45000000")
    cexp(A, 24, 25, 20, 21, "s48", 16)
    cexp(A, 26, 27, 20, 21, "4.0", 16)
    cexp(A, 28, 29, 20, 21, "s49", 16)
    A("v_mul_f32 v28, v28, v22")
    A("v_fma_f32 v28, -v29, v23, v28")
    A("s_lshl_b32 s50, s27, 12")
    A("s_lshl_b32 s51, s28, 11")
    A("s_add_u32 s50, s50, s51")
    A(f"s_add_u32 s50, s50, {PT}")
    A("v_lshlrev_b32 v15, 5, v2")
    A("v_add_u32 v15, s50, v15")
    A("ds_write_b128 v15, v[20:23]")
    A("ds_write_b128 v15, v[24:27] offset:16")
    for sh in (1, 2, 4, 8):
        A("s_nop 1")
        A(f"v_add_f32_dpp v28, v28, v28 row_shr:{sh} row_mask:0xf bank_mask:0xf bound_ctrl:0")
    A("s_nop 1")
    A("v_add_f32_dpp v28, v28, v28 row_bcast:15 row_mask:0xa bank_mask:0xf")
    A("s_nop 1")
    A("v_add_f32_dpp v28, v28, v28 row_bcast:31 row_mask:0xc bank_mask:0xf")
    A("s_lshl_b32 s51, s25, 2")
    A(f"s_add_u32 s51, s51, {F2K}")
    A("v_mov_b32 v29, s51")
    A("s_mov_b64 s[44:45], exec")
    A("s_mov_b32 exec_lo, 0")
    A("s_mov_b32 exec_hi, 0x80000000")
    A("ds_write_b32 v29, v28")
    A("s_mov_b64 exec, s[44:45]")
    A("v_and_b32 v16, 15, v2")
    A("v_lshrrev_b32 v17, 4, v2")
    A("v_lshrrev_b32 v18, 2, v16")
    A("v_lshlrev_b32 v18, 3, v18")
    A("v_and_b32 v19, 3, v16")
    A("v_add_u32 v18, v18, v19")
    A("v_cvt_f32_u32 v18, v18")
    A("v_lshlrev_b32 v19, 5, v16")
    A("v_cvt_f32_u32 v19, v19")
    A("v_lshlrev_b32 v15, 7, v17")
    A("v_add_u32 v15, s50, v15")
    FA = 96
    for i in range(32): A(f"v_mov_b32 v{FA+i}, 0")
    PR = 32
    YA = 64
    XB = 72
    A("s_waitcnt lgkmcnt(0)")
    for ks in range(4):
        for m in range(4):
            A(f"ds_read_b128 {v(PR+8*m,4)}, v15 offset:{ks*512 + m*32}")
            A(f"ds_read_b128 {v(PR+8*m+4,4)}, v15 offset:{ks*512 + m*32 + 16}")
        for m in range(4):
            A(f"s_waitcnt lgkmcnt({6-2*m})")
            p = PR + 8*m
            al, be, cre, cim, wre, wim, qre, qim = [p+k for k in range(8)]
            cexp(A, 20, 21, al, be, "v18", 28)
            cmul(A, 22, 23, 20, 21, qre, qim, 28)
            A(f"v_cvt_pk_bf16_f32 v{YA+m}, v20, v21")
            A(f"v_cvt_pk_bf16_f32 v{YA+4+m}, v22, v23")
            cexp(A, 20, 21, al, be, "v19", 28)
            cmul(A, 22, 23, 20, 21, cre, cim, 28)
            A(f"v_cvt_pk_bf16_f32 v{XB+m}, v22, -v23")
            cmul(A, 20, 21, 22, 23, wre, wim, 28)
            A(f"v_cvt_pk_bf16_f32 v{XB+4+m}, v20, -v21")
            cmul(A, 22, 23, 20, 21, wre, wim, 28)
            A(f"v_cvt_pk_bf16_f32 v{XB+8+m}, v22, -v23")
            cmul(A, 20, 21, 22, 23, wre, wim, 28)
            A(f"v_cvt_pk_bf16_f32 v{XB+12+m}, v20, -v21")
        A("s_nop 1")
        for c in range(2):
            for r in range(4):
                acc = FA + (c*4+r)*4
                A(f"v_mfma_f32_16x16x32_bf16 {v(acc,4)}, {v(YA+4*c,4)}, {v(XB+4*r,4)}, {v(acc,4)}")
    stamp(A, 4)
    A("s_waitcnt vmcnt(0)")
    for r in range(3):
        A(f"v_mov_b32_dpp v{W+r}, v{W+3+5+r} wave_shr:1 row_mask:0xf bank_mask:0xf")
    A("s_mov_b32 s52, 0x05040100")
    A("s_mov_b32 s53, 0x07060302")
    A("v_sub_u32 v14, 255, v0")
    A("v_lshlrev_b32 v14, 4, v14")
    Q = 128
    for ch in range(2):
        for c in range(4):
            q = Q + (ch*4+c)*4
            for k in range(4):
                r = 7 - c - 2*k
                A(f"v_perm_b32 v{q+k}, v{W+3+r-1}, v{W+3+r}, s{52+ch}")
            A(f"ds_write_b128 v14, {v(q,4)} offset:{UB + ch*UCH + c*CS}")
    A("s_nop 7")
    A("v_lshlrev_b32 v14, 4, v2")
    A("s_lshl_b32 s54, s25, 12")
    A(f"s_add_u32 s54, s54, {RED}")
    A("v_add_u32 v15, s54, v14")
    A("s_xor_b32 s55, s25, 1")
    A("s_lshl_b32 s55, s55, 12")
    A(f"s_add_u32 s55, s55, {RED}")
    A("v_add_u32 v16, s55, v14")
    h1 = A.label("h1"); hd = A.label("hd")
    A("s_cmp_eq_u32 s28, 1")
    A(f"s_cbranch_scc1 {h1}")
    for c in range(2):
        for rr in range(2):
            A(f"ds_write_b128 v15, {v(FA+(c*4+2+rr)*4,4)} offset:{(c*2+rr)*1024}")
            for k in range(4): A(f"v_mov_b32 v{64+(c*2+rr)*4+k}, v{FA+(c*4+rr)*4+k}")
    A(f"s_branch {hd}")
    A(f"{h1}:")
    for c in range(2):
        for rr in range(2):
            A(f"ds_write_b128 v15, {v(FA+(c*4+rr)*4,4)} offset:{(c*2+rr)*1024}")
            for k in range(4): A(f"v_mov_b32 v{64+(c*2+rr)*4+k}, v{FA+(c*4+2+rr)*4+k}")
    A(f"{hd}:")
    A("s_waitcnt lgkmcnt(0)")
    A("s_barrier")
    for t in range(4): A(f"ds_read_b128 {v(80+4*t,4)}, v16 offset:{t*1024}")
    A("s_lshl_b32 s51, s27, 3")
    A(f"s_add_u32 s51, s51, {F2K}")
    A("v_mov_b32 v29, s51")
    A("ds_read_b64 v[30:31], v29")
    A("s_waitcnt lgkmcnt(0)")
    for i in range(16): A(f"v_add_f32 v{64+i}, v{64+i}, v{80+i}")
    A("v_and_b32 v16, 15, v2")
    A("v_lshlrev_b32 v16, 6, v16")
    A("v_lshrrev_b32 v17, 4, v2")
    A("v_lshlrev_b32 v17, 4, v17")
    A("v_add_u32 v16, v16, v17")
    A(f"s_mul_i32 s56, s27, {FCH}")
    A("s_lshl_b32 s57, s28, 11")
    A("s_add_u32 s57, s57, s56")
    A(f"s_add_u32 s57, s57, {FB}")
    A("v_add_u32 v16, s57, v16")
    for rr in range(2):
        for c in range(2):
            t = 64 + (c*2+rr)*4
            A(f"v_cvt_pk_bf16_f32 v{32+rr*4+c*2}, v{t}, v{t+1}")
            A(f"v_cvt_pk_bf16_f32 v{32+rr*4+c*2+1}, v{t+2}, v{t+3}")
        A(f"ds_write_b128 v16, {v(32+rr*4,4)} offset:{rr*1024}")
    A("v_add_f32 v30, v30, v31")
    A("v_cvt_pk_bf16_f32 v30, v30, v30")
    A(f"s_add_u32 s56, s56, {FB+4096}")
    A("v_mov_b32 v29, s56")
    A("s_mov_b64 s[44:45], exec")
    A("s_mov_b64 exec, 1")
    A("ds_write_b16 v29, v30")
    A("s_mov_b64 exec, s[44:45]")
    A("s_waitcnt lgkmcnt(0)")
    A("s_barrier")
    for e in range(16):
        op = "ds_read_u16" if e % 2 == 0 else "ds_read_u16_d16_hi"
        A(f"{op} v{(32 if e % 2 == 0 else 40)+e//2}, v{GA+e}")
        if e == 11: A("s_waitcnt lgkmcnt(4)")
    A("v_and_b32 v16, 127, v0")
    A("v_lshlrev_b32 v16, 5, v16")
    A("v_lshrrev_b32 v17, 7, v0")
    A(f"v_mul_u32_u24 v17, {KCH}, v17")
    A("v_add_u32 v16, v16, v17")
    A("s_waitcnt lgkmcnt(0)")
    for k in range(8): A(f"v_or_b32 v{32+k}, v{32+k}, v{40+k}")
    A(f"ds_write_b128 v16, v[32:35] offset:{KB+512}")
    A(f"ds_write_b128 v16, v[36:39] offset:{KB+512+16}")
    A("s_waitcnt lgkmcnt(0)")
    A("s_barrier")
    stamp(A, 5)
    if getattr(A, "dump", False):
        dl = A.label("nodump")
        A("s_cmp_lg_u32 s24, 0")
        A(f"s_cbranch_scc1 {dl}")
        srd_off(A, 36, 4, 5, 0x2000000, 81920)
        A("v_lshlrev_b32 v14, 4, v0")
        for k in range(20):
            A(f"ds_read_b128 v[32:35], v14 offset:{k*4096}" if k < 16 else f"ds_read_b128 v[32:35], v13 offset:{(k-16)*4096}")
            if k == 15: A("v_add_u32 v13, 65536, v14")
            A("s_waitcnt lgkmcnt(0)")
            A(f"s_mov_b32 s58, {k*4096}")
            A("buffer_store_dwordx4 v[32:35], v14, s[36:39], s58 offen")
            A("s_waitcnt vmcnt(0)")
        A(f"{dl}:")
    A("v_and_b32 v16, 15, v2")
    A("v_lshrrev_b32 v17, 4, v2")
    A("v_lshlrev_b32 v18, 5, v16")
    A("v_lshlrev_b32 v19, 4, v17")
    A("v_add_u32 v18, v18, v19")
    A(f"s_mul_i32 s56, s27, {KCH}")
    A("s_lshl_b32 s57, s28, 8")
    A("s_sub_u32 s56, s56, s57")
    A(f"s_add_u32 s56, s56, {KB+480-192}")
    A("v_add_u32 v18, s56, v18")
    A("v_and_b32 v20, 3, v16")
    A("v_sub_u32 v20, 3, v20")
    A(f"v_mul_u32_u24 v20, {CS}, v20")
    A("v_add_u32 v20, v20, v19")
    A("v_lshrrev_b32 v21, 2, v16")
    A("v_lshlrev_b32 v21, 3, v21")
    A("v_sub_u32 v20, v20, v21")
    A(f"s_mul_i32 s56, s27, {UCH}")
    A("s_sub_u32 s56, s56, s57")
    A(f"s_add_u32 s56, s56, {UB+24}")
    A("v_add_u32 v19, s56, v20")
    CA = 32
    for i in range(32): A(f"v_mov_b32 v{CA+i}, 0")
    FS = 64
    def creads(rp, fs):
        b = FS + fs*64
        for sg in range(8):
            o = 4032 - 512*sg - 64*rp
            A(f"ds_read_b64 {v(b+4*sg,2)}, v19 offset:{o}")
            A(f"ds_read_b64 {v(b+4*sg+2,2)}, v19 offset:{o+8}")
            A(f"ds_read_b128 {v(b+32+4*sg,4)}, v18 offset:{192 + 512*sg - 64*rp}")
    def cmf(fs):
        b = FS + fs*64
        pairs = sorted([(sg, q) for q in range(8) for sg in range(q+1)], key=lambda p: (max(p[0], p[1]-p[0]), p[1]))
        return pairs, b
    creads(0, 0)
    for rp in range(4):
        fs = rp % 2
        if rp + 1 < 4:
            creads(rp+1, 1-fs)
            A("s_waitcnt lgkmcnt(15)")
        pairs, b = cmf(fs)
        if rp + 1 < 4:
            pass
        else:
            A("s_waitcnt lgkmcnt(0)")
        for (sg, q) in pairs:
            A(f"v_mfma_f32_16x16x32_bf16 {v(CA+4*q,4)}, {v(b+4*sg,4)}, {v(b+32+4*(q-sg),4)}, {v(CA+4*q,4)}")
    stamp(A, 6)
    A("s_nop 7")
    A("v_lshlrev_b32 v14, 4, v2")
    A("v_add_u32 v15, s54, v14")
    A("v_add_u32 v16, s55, v14")
    h1 = A.label("h1"); hd = A.label("hd")
    A("s_cmp_eq_u32 s28, 1")
    A(f"s_cbranch_scc1 {h1}")
    for t in range(4):
        A(f"ds_write_b128 v15, {v(CA+16+4*t,4)} offset:{t*1024}")
        for k in range(4): A(f"v_mov_b32 v{64+4*t+k}, v{CA+4*t+k}")
    A(f"s_branch {hd}")
    A(f"{h1}:")
    for t in range(4):
        A(f"ds_write_b128 v15, {v(CA+4*t,4)} offset:{t*1024}")
        for k in range(4): A(f"v_mov_b32 v{64+4*t+k}, v{CA+16+4*t+k}")
    A(f"{hd}:")
    A("s_waitcnt lgkmcnt(0)")
    A("s_barrier")
    for t in range(4): A(f"ds_read_b128 {v(80+4*t,4)}, v16 offset:{t*1024}")
    A("v_and_b32 v16, 15, v2")
    A("v_lshrrev_b32 v17, 4, v2")
    A("v_lshlrev_b32 v20, 5, v16")
    A("v_lshlrev_b32 v21, 3, v17")
    A("v_add_u32 v20, v20, v21")
    A(f"s_mul_i32 s56, s27, {UCH}")
    A("s_lshl_b32 s57, s28, 11")
    A("s_sub_u32 s56, s56, s57")
    A(f"s_add_u32 s56, s56, {UB + 4088 - 1536}")
    A("v_sub_u32 v21, s56, v20")
    for t in range(4): A(f"ds_read_b64 {v(100+2*t,2)}, v21 offset:{1536 - 512*t}")
    A("s_waitcnt lgkmcnt(0)")
    A("v_mov_b32 v22, s33")
    for t in range(4):
        for k in range(4): A(f"v_add_f32 v{64+4*t+k}, v{64+4*t+k}, v{80+4*t+k}")
        y = 64 + 4*t
        A(f"v_cvt_pk_bf16_f32 v24, v{y}, v{y+1}")
        A(f"v_cvt_pk_bf16_f32 v25, v{y+2}, v{y+3}")
        A(f"v_lshlrev_b32 v{y}, 16, v24")
        A(f"v_and_b32 v{y+1}, s46, v24")
        A(f"v_lshlrev_b32 v{y+2}, 16, v25")
        A(f"v_and_b32 v{y+3}, s46, v25")
        u0, u1 = 100+2*t, 101+2*t
        A(f"v_and_b32 v26, s46, v{u1}")
        A(f"v_lshlrev_b32 v27, 16, v{u1}")
        A(f"v_and_b32 v28, s46, v{u0}")
        A(f"v_lshlrev_b32 v29, 16, v{u0}")
        for k in range(4): A(f"v_mul_f32 v{26+k}, v{26+k}, v22")
        A("v_cvt_pk_bf16_f32 v24, v26, v27")
        A("v_cvt_pk_bf16_f32 v25, v28, v29")
        A("v_lshlrev_b32 v26, 16, v24")
        A("v_and_b32 v27, s46, v24")
        A("v_lshlrev_b32 v28, 16, v25")
        A("v_and_b32 v29, s46, v25")
        for k in range(4): A(f"v_add_f32 v{26+k}, v{26+k}, v{y+k}")
        A(f"v_cvt_pk_bf16_f32 v{112+2*t}, v26, v27")
        A(f"v_cvt_pk_bf16_f32 v{113+2*t}, v28, v29")
    A("s_lshl_b32 s56, s29, 12")
    A("s_lshl_b32 s57, s28, 11")
    A("s_add_u32 s56, s56, s57")
    A(f"s_add_u32 s56, s56, {WS_AT}")
    srd_off(A, 36, 4, 5, "s56", 2048)
    for t in range(4):
        A(f"buffer_store_dwordx2 {v(112+2*t,2)}, v20, s[36:39], 0 offen offset:{512*t}")
    stamp(A, 7)
    A(f"s_branch {endlabel}")
```

```python
from asmlib import *

NSET = 7
def gen_kb(A, name="kb_kernel"):
    kernel_header(A, name)
    end = A.label("kb_end")
    A("s_cmp_ge_u32 s2, 256")
    A(f"s_cbranch_scc1 {end}")
    stamp(A, 0, real=True); stamp(A, 1)
    A(f"s_load_dwordx2 s[4:5], s[0:1], {KA['ws']}")
    A(f"s_load_dwordx2 s[6:7], s[0:1], {KA['out']}")
    A("v_lshrrev_b32 v1, 6, v0")
    A("v_and_b32 v2, 63, v0")
    A("s_and_b32 s8, s2, 7")
    A("v_readfirstlane_b32 s9, v1")
    A("s_lshr_b32 s10, s2, 3")
    A("s_and_b32 s11, s10, 3")
    A("s_lshl_b32 s8, s8, 2")
    A("s_add_u32 s8, s8, s11")
    A("s_lshr_b32 s10, s10, 2")
    A("v_lshlrev_b32 v3, 4, v2")
    A("s_mul_i32 s12, s9, 14")
    A("s_mul_i32 s13, s8, 56")
    A("s_add_u32 s13, s13, s12")
    A("s_lshl_b32 s13, s13, 12")
    A("s_mul_i32 s14, s10, 56")
    A("s_add_u32 s14, s14, s12")
    A("s_lshl_b32 s14, s14, 12")
    A(f"s_add_u32 s14, s14, {WS_W2F}")
    A("v_lshrrev_b32 v4, 3, v2")
    A("v_lshlrev_b32 v4, 12, v4")
    A("v_and_b32 v5, 7, v2")
    A("v_lshlrev_b32 v5, 4, v5")
    A("v_add_u32 v4, v4, v5")
    A("s_lshl_b32 s15, s10, 6")
    A("s_lshl_b32 s16, s9, 4")
    A("s_add_u32 s15, s15, s16")
    A("s_lshl_b32 s15, s15, 12")
    A("s_lshl_b32 s16, s8, 7")
    A("s_add_u32 s15, s15, s16")
    A(f"s_add_u32 s15, s15, {WS_AT}")
    A("v_and_b32 v5, 15, v2")
    A("v_lshlrev_b32 v6, 2, v5")
    A("s_lshl_b32 s17, s8, 8")
    A("s_lshl_b32 s18, s9, 6")
    A("s_add_u32 s17, s17, s18")
    A(f"s_add_u32 s17, s17, {WS_G}")
    A("s_waitcnt lgkmcnt(0)")
    srd_off(A, 20, 4, 5, "s13", 14*4096)
    srd_off(A, 24, 4, 5, "s14", 14*4096)
    srd_off(A, 28, 4, 5, "s15", 16*4096)
    srd_off(A, 32, 4, 5, "s17", 64)
    A("s_lshl_b32 s19, s9, 11")
    A("s_add_u32 s19, s19, 65536")
    A("s_mov_b32 m0, s19")
    A("s_mov_b32 s36, 32768")
    A("buffer_load_dwordx4 v4, s[28:31], 0 offen lds")
    A("s_add_u32 s19, s19, 1024")
    A("s_mov_b32 m0, s19")
    A("s_nop 0")
    A("buffer_load_dwordx4 v4, s[28:31], s36 offen lds")
    A("buffer_load_dword v7, v6, s[32:35], 0 offen")
    SET0 = 8
    def setreg(k, i): return SET0 + (k % NSET) * 32 + i * 4
    def issue(step):
        A(f"s_mov_b32 s37, {step*4096}")
        for i in range(4):
            A(f"buffer_load_dwordx4 {v(setreg(step, i),4)}, v3, s[24:27], s37 offen offset:{i*1024}")
            A(f"buffer_load_dwordx4 {v(setreg(step, 4+i),4)}, v3, s[20:23], s37 offen offset:{i*1024}")
    for st in range(NSET): issue(st)
    for i in range(64): A(f"v_accvgpr_write_b32 a{i}, 0")
    for st in range(14):
        last = min(st + NSET - 1, 13)
        A(f"s_waitcnt vmcnt({8*(last-st)})")
        if st == 0: stamp(A, 2)
        if st == 7: stamp(A, 3)
        for dt in range(4):
            for lt in range(4):
                acc = (dt*4 + lt)*4
                A(f"v_mfma_f32_16x16x32_bf16 {a_(acc,4)}, {v(setreg(st,dt),4)}, {v(setreg(st,4+lt),4)}, {a_(acc,4)}")
        if st + NSET < 14: issue(st + NSET)
    stamp(A, 4)
    A("s_nop 7")
    A("s_nop 1")
    A("s_lshl_b32 s38, s9, 12")
    A("v_add_u32 v8, s38, v3")
    for lt in range(4):
        skip = A.label("skipw")
        A(f"s_cmp_eq_u32 s9, {lt}")
        A(f"s_cbranch_scc1 {skip}")
        for dt in range(4):
            acc = (dt*4 + lt)*4
            A(f"ds_write_b128 v8, {a_(acc,4)} offset:{lt*16384 + dt*1024}")
        A(f"{skip}:")
    for lt in range(4):
        skip = A.label("skipo")
        A(f"s_cmp_lg_u32 s9, {lt}")
        A(f"s_cbranch_scc1 {skip}")
        for dt in range(4):
            for r in range(4):
                A(f"v_accvgpr_read_b32 v{16+dt*4+r}, a{(dt*4+lt)*4+r}")
        A(f"{skip}:")
    A("s_waitcnt vmcnt(0) lgkmcnt(0)")
    A("s_barrier")
    A("s_lshl_b32 s38, s9, 14")
    A("v_add_u32 v8, s38, v3")
    for q in range(1, 4):
        A(f"s_add_u32 s39, s9, {q}")
        A("s_and_b32 s39, s39, 3")
        A("s_lshl_b32 s39, s39, 12")
        A(f"v_add_u32 v{8+q}, s39, v8")
    for q in range(1, 4):
        for dt in range(4):
            A(f"ds_read_b128 {v(32+(q-1)*16+dt*4,4)}, v{8+q} offset:{dt*1024}")
    A("v_lshrrev_b32 v12, 4, v2")
    A("v_lshlrev_b32 v13, 10, v12")
    A("v_lshrrev_b32 v14, 2, v2")
    A("v_and_b32 v14, 3, v14")
    A("v_lshlrev_b32 v14, 7, v14")
    A("v_add_u32 v13, v13, v14")
    A("v_and_b32 v14, 3, v2")
    A("v_lshlrev_b32 v14, 3, v14")
    A("v_add_u32 v13, v13, v14")
    A("s_lshl_b32 s38, s9, 5")
    A("s_add_u32 s38, s38, 65536")
    A("v_add_u32 v13, s38, v13")
    for dt in range(4):
        A(f"ds_read_b64_tr_b16 {v(80+dt*2,2)}, v13 offset:{(dt>>1)*4096 + (dt&1)*512}")
    A("s_waitcnt lgkmcnt(4)")
    for q in range(3):
        for i in range(16):
            A(f"v_add_f32 v{16+i}, v{16+i}, v{32+q*16+i}")
    A("v_sub_f32 v8, 1.0, v7")
    A("v_cvt_pk_bf16_f32 v8, v8, v8")
    A("v_and_b32 v8, 0xffff0000, v8")
    A("s_waitcnt lgkmcnt(0)")
    A("s_mov_b32 s40, 0xffff0000")
    for p in range(8):
        b0, b1 = 16+2*p, 17+2*p
        A(f"v_cvt_pk_bf16_f32 v9, v{b0}, v{b1}")
        A(f"v_lshlrev_b32 v{b0}, 16, v9")
        A(f"v_and_b32 v{b1}, s40, v9")
        A(f"v_lshlrev_b32 v10, 16, v{80+p}")
        A(f"v_and_b32 v11, s40, v{80+p}")
        A(f"v_mul_f32 v10, v7, v10")
        A(f"v_mul_f32 v11, v7, v11")
        A(f"v_mul_f32 v{b0}, v8, v{b0}")
        A(f"v_mul_f32 v{b1}, v8, v{b1}")
        A(f"v_cvt_pk_bf16_f32 v9, v10, v11")
        A(f"v_cvt_pk_bf16_f32 v12, v{b0}, v{b1}")
        A(f"v_lshlrev_b32 v10, 16, v9")
        A(f"v_and_b32 v11, s40, v9")
        A(f"v_lshlrev_b32 v{b0}, 16, v12")
        A(f"v_and_b32 v{b1}, s40, v12")
        A(f"v_add_f32 v10, v10, v{b0}")
        A(f"v_add_f32 v11, v11, v{b1}")
        A(f"v_cvt_pk_bf16_f32 v{88+p}, v10, v11")
    A("v_and_b32 v5, 15, v2")
    A("v_lshlrev_b32 v5, 10, v5")
    A("v_lshrrev_b32 v12, 4, v2")
    A("v_lshlrev_b32 v12, 4, v12")
    A("v_add_u32 v5, v5, v12")
    A("s_lshl_b32 s38, s8, 16")
    A("s_lshl_b32 s39, s9, 14")
    A("s_add_u32 s38, s38, s39")
    A("s_lshl_b32 s39, s10, 7")
    A("s_add_u32 s38, s38, s39")
    srd(A, 44, 6, 7, 2048*1024)
    A("buffer_store_dwordx4 v[88:91], v5, s[44:47], s38 offen")
    A("buffer_store_dwordx4 v[92:95], v5, s[44:47], s38 offen offset:64")
    if getattr(A, "stamps", False):
        A("s_waitcnt vmcnt(0)")
        stamp(A, 5); stamp(A, 6, real=True)
        stamp_flush(A, 7, "s4", "s5", wave_sgpr="s9")
    A(f"{end}:")
    A("s_endpgm")
    return dict(name=name, vgpr=256+64, accum=256)
```

```python
import sys
from asmlib import *
from kb import gen_kb
from ka_gemm1 import gen_gemm1
from ka_side import gen_side
from ka_ssm import gen_ssm
HDR = open("gated_mix__ssm_conv_s4__dense_activation_silu__prompt.s.ref").read().split("; Override launch geometry")[0]
def build(stamps=False, only=None, dump=False):
    A = Asm(); A.stamps = stamps; A.dump = dump
    A.lines.append(HDR.rstrip("\n"))
    if only in (None, "a"): A("; @launch kernel=ka_kernel grid=(512,1,1) block=(256,1,1) lds=81920")
    if only in (None, "b"): A("; @launch kernel=kb_kernel grid=(256,1,1) block=(256,1,1) lds=73728")
    A('.amdgcn_target "amdgcn-amd-amdhsa--gfx950"')
    A(".text")
    kernel_header(A, "ka_kernel")
    fin = "L_ka_fin"; end = "L_ka_end"
    A("s_cmp_ge_u32 s2, 512")
    A(f"s_cbranch_scc1 {end}")
    stamp(A, 0, real=True); stamp(A, 1)
    if stamps:
        A("v_lshrrev_b32 v1, 6, v0\ns_nop 0\nv_readfirstlane_b32 s96, v1")
    A("s_cmp_ge_u32 s2, 256")
    A("s_cbranch_scc1 L_role_ssm")
    A("s_cmp_ge_u32 s2, 224")
    A("s_cbranch_scc1 L_role_side")
    gen_gemm1(A, fin)
    A("L_role_side:")
    gen_side(A, fin)
    A("L_role_ssm:")
    gen_ssm(A, fin)
    A(f"{fin}:")
    if stamps:
        A("s_waitcnt vmcnt(0)")
        stamp(A, 8); stamp(A, 9, real=True)
        A("v_lshrrev_b32 v1, 6, v0") if False else None
        stamp_flush(A, 10, "s4", "s5", wave_sgpr="s96")
    A(f"{end}:")
    A("s_endpgm")
    kb = gen_kb(A)
    A('.section .rodata,"a"')
    kernel_desc(A, "ka_kernel", 256, 256)
    kernel_desc(A, kb["name"], kb["vgpr"], kb["accum"])
    return A.text()
if __name__ == "__main__":
    st = "st" in sys.argv
    only = "a" if "a" in sys.argv else ("b" if "b" in sys.argv else None)
    out = sys.argv[1]
    open(out, "w").write(build(st, only, "dump" in sys.argv))
```

```python
class Asm:
    def __init__(self):
        self.lines = []
        self.uid = 0
    def __call__(self, s):
        for l in s.strip("\n").split("\n"):
            self.lines.append(l.strip() if not l.strip().endswith(":") else l.strip())
    def c(self, s):
        self.lines.append("; " + s)
    def label(self, base):
        self.uid += 1
        return f"L_{base}_{self.uid}"
    def text(self):
        return "\n".join(self.lines) + "\n"

def v(a, n=1):
    return f"v{a}" if n == 1 else f"v[{a}:{a+n-1}]"
def a_(a, n=1):
    return f"a{a}" if n == 1 else f"a[{a}:{a+n-1}]"
def s(a, n=1):
    return f"s{a}" if n == 1 else f"s[{a}:{a+n-1}]"

def srd(A, d, base_lo, base_hi, nbytes):
    A(f"s_mov_b32 s{d}, s{base_lo}")
    A(f"s_and_b32 s{d+1}, s{base_hi}, 0xffff")
    A(f"s_mov_b32 s{d+2}, {nbytes}")
    A(f"s_mov_b32 s{d+3}, 0x20000")

def srd_off(A, d, base_lo, base_hi, off_sgpr_or_imm, nbytes):
    A(f"s_add_u32 s{d}, s{base_lo}, {off_sgpr_or_imm}")
    A(f"s_addc_u32 s{d+1}, s{base_hi}, 0")
    A(f"s_and_b32 s{d+1}, s{d+1}, 0xffff")
    A(f"s_mov_b32 s{d+2}, {nbytes}")
    A(f"s_mov_b32 s{d+3}, 0x20000")

def kernel_header(A, name):
    A(f".globl {name}")
    A(".p2align 8")
    A(f".type {name},@function")
    A(f"{name}:")

def kernel_desc(A, name, vgpr, accum, sgpr=102):
    A(".p2align 6")
    A(f".amdhsa_kernel {name}")
    A(f"  .amdhsa_next_free_vgpr {vgpr}")
    A(f"  .amdhsa_next_free_sgpr {sgpr}")
    A(f"  .amdhsa_accum_offset {accum}")
    A("  .amdhsa_group_segment_fixed_size 0")
    A("  .amdhsa_kernarg_size 128")
    A("  .amdhsa_user_sgpr_count 2")
    A("  .amdhsa_user_sgpr_kernarg_segment_ptr 1")
    A("  .amdhsa_system_sgpr_workgroup_id_x 1")
    A("  .amdhsa_float_denorm_mode_32 3")
    A("  .amdhsa_float_denorm_mode_16_64 3")
    A(".end_amdhsa_kernel")

WS_H   = 0x0000000
WS_W2F = 0x0800000
WS_AT  = 0x0A00000
WS_G   = 0x0C00000
WS_UT  = 0x1000000
WS_F   = 0x1400000
WS_KX  = 0x1600000
KA = dict(u=0, A_re=8, A_im=16, B_re=24, B_im=32, C_re=40, C_im=48, log_dt=56, Dskip=64, x=72, w1=80, w2=88, gate_w=96, out=104, dbg=112, ws=120)

WS_STAMP = 0x3000000
def stamp(A, k, real=False):
    if not getattr(A, "stamps", False): return
    A(("s_memrealtime" if real else "s_memtime") + f" s[{64+2*k}:{65+2*k}]")
def stamp_flush(A, n, ws_lo, ws_hi, wg="s2", wave_sgpr=None, slot_mul=4, base=0):
    if not getattr(A, "stamps", False): return
    A("s_waitcnt lgkmcnt(0)")
    A(f"s_lshl_b32 s90, {wg}, 8")
    if wave_sgpr is not None:
        A(f"s_lshl_b32 s91, {wave_sgpr}, 6")
        A("s_add_u32 s90, s90, s91")
    A(f"s_add_u32 s90, s90, {WS_STAMP+base}")
    A(f"s_add_u32 s92, {ws_lo}, s90")
    A(f"s_addc_u32 s93, {ws_hi}, 0")
    A("s_and_b32 s93, s93, 0xffff")
    A("s_mov_b32 s94, 64")
    A("s_mov_b32 s95, 0x20000")
    A("s_mov_b64 s[98:99], exec")
    A("s_mov_b64 exec, 1")
    A("v_mov_b32 v1, 0")
    for k in range(n):
        A(f"v_mov_b32 v0, s{64+2*k}")
        A(f"buffer_store_dword v0, v1, s[92:95], 0 offen offset:{4*k}")
        A("s_nop 1")
    A("s_getreg_b32 s91, hwreg(HW_REG_HW_ID)")
    A("v_mov_b32 v0, s91")
    A("buffer_store_dword v0, v1, s[92:95], 0 offen offset:56")
    A("s_nop 1")
    A("s_getreg_b32 s91, hwreg(HW_REG_XCC_ID)")
    A("v_mov_b32 v0, s91")
    A("buffer_store_dword v0, v1, s[92:95], 0 offen offset:60")
    A("s_mov_b64 exec, s[98:99]")
```

```python
from asmlib import *

LOG2E = 0x3fb8aa3b

def gen_gemm1(A, endlabel):
    A.c("==== GEMM1 role ====")
    A(f"s_load_dwordx2 s[4:5], s[0:1], {KA['ws']}")
    A(f"s_load_dwordx2 s[6:7], s[0:1], {KA['u']}")
    A(f"s_load_dwordx2 s[8:9], s[0:1], {KA['w1']}")
    A("v_lshrrev_b32 v1, 6, v0")
    A("v_and_b32 v2, 63, v0")
    A("s_and_b32 s10, s2, 7")
    A("v_readfirstlane_b32 s11, v1")
    A("s_lshr_b32 s12, s2, 3")
    if getattr(A, "map47", 0):
        A("s_and_b32 s13, s12, 3")
        A("s_lshr_b32 s14, s10, 1")
        A("s_lshl_b32 s14, s14, 2")
        A("s_and_b32 s15, s10, 1")
        A("s_mul_i32 s15, s15, 7")
        A("s_lshr_b32 s12, s12, 2")
        A("s_add_u32 s10, s14, s13")
        A("s_add_u32 s12, s12, s15")
        A("s_lshl_b32 s13, s13, 1")
    else:
        A("s_and_b32 s13, s12, 1")
        A("s_lshl_b32 s10, s10, 1")
        A("s_add_u32 s10, s10, s13")
        A("s_lshr_b32 s12, s12, 1")
        A("s_lshl_b32 s13, s13, 2")
    A("v_lshrrev_b32 v6, 3, v2")
    A("v_and_b32 v7, 7, v2")
    A("v_lshrrev_b32 v8, 1, v6")
    A("v_xor_b32 v7, v7, v8")
    A("v_lshlrev_b32 v7, 4, v7")
    A("v_lshlrev_b32 v6, 10, v6")
    A("v_add_u32 v3, v6, v7")
    A("v_xor_b32 v5, 64, v3")
    A("v_lshrrev_b32 v6, 4, v2")
    A("v_and_b32 v7, 15, v2")
    A("v_lshrrev_b32 v8, 1, v7")
    A("v_lshlrev_b32 v9, 1, v6")
    A("v_xor_b32 v8, v8, v9")
    A("v_lshlrev_b32 v8, 1, v8")
    A("v_and_b32 v7, 1, v7")
    A("v_or_b32 v8, v8, v7")
    A("v_lshlrev_b32 v8, 4, v8")
    A("v_mul_u32_u24 v6, 3584, v6")
    A("v_add_u32 v4, v6, v8")
    A("s_lshl_b32 s14, s11, 15")
    for q in range(4):
        A(f"s_add_u32 s{40+q}, s14, {q*(8192-1024)}")
    A("s_mul_i32 s14, s11, %d" % (16*3584))
    for q in range(4):
        A(f"s_add_u32 s{44+q}, s14, {q*(4*3584-1024)}")
    A("s_lshl_b32 s15, s11, 12")
    A("s_lshl_b32 s16, s10, 17")
    A("s_lshl_b32 s17, s12, 8")
    A(f"s_sub_u32 s18, {512*3584}, s17")
    A("s_waitcnt lgkmcnt(0)")
    srd_off(A, 20, 6, 7, "s16", 128*1024)
    A("s_add_u32 s24, s8, s17")
    A("s_addc_u32 s25, s9, 0")
    A("s_and_b32 s25, s25, 0xffff")
    A("s_mov_b32 s26, s18")
    A("s_mov_b32 s27, 0x20000")
    rot = getattr(A, "rot", 0)
    A("s_and_b32 s48, s2, 7")
    if rot < 2: A("s_mov_b32 s48, 0")
    if rot:
        A("s_add_u32 s48, s48, s13")
        A("s_add_u32 s48, s48, s12")
        A("s_and_b32 s48, s48, 7")
    A("s_mov_b32 s49, s48")
    def issue_parts(n):
        slot = (n % 5) * 16384
        setup = [f"s_add_u32 m0, s15, {slot}"]
        if n % 2 == 0:
            setup.append("s_lshl_b32 s54, s48, 7")
            setup += [f"s_add_u32 s{50+q}, s{40+q}, s54" for q in range(4)]
            setup += ["s_add_u32 s48, s48, 1", "s_and_b32 s48, s48, 7"]
            ins = [f"buffer_load_dwordx4 {'v3' if q % 2 == 0 else 'v5'}, s[20:23], s{50+q} offen offset:{q*1024} lds" for q in range(4)]
        else:
            setup.append(f"s_mul_i32 s54, s49, {64*3584}")
            setup += [f"s_add_u32 s{56+q}, s{44+q}, s54" for q in range(4)]
            setup += ["s_add_u32 s49, s49, 1", "s_and_b32 s49, s49, 7"]
            ins = [f"buffer_load_dwordx4 v4, s[24:27], s{56+q} offen offset:{q*1024} lds" for q in range(4)]
        return setup, ins
    def issue2(n):
        setup, ins = issue_parts(n)
        for l in setup + ins: A(l)
    for n in (0, 1, 3): issue2(n)
    A("s_and_b32 s19, s11, 1")
    A("s_lshr_b32 s28, s11, 1")
    A("v_and_b32 v6, 31, v2")
    A("v_lshrrev_b32 v7, 5, v2")
    A("v_lshrrev_b32 v8, 1, v6")
    A("v_and_b32 v8, 7, v8")
    A("v_xor_b32 v8, v8, v7")
    A("v_lshlrev_b32 v8, 4, v8")
    A("v_lshlrev_b32 v9, 7, v6")
    A("v_add_u32 v8, v8, v9")
    A("s_lshl_b32 s29, s19, 13")
    A("v_add_u32 v8, s29, v8")
    for js in range(1, 4): A(f"v_xor_b32 v{8+js}, {js*32}, v8")
    A("v_lshrrev_b32 v14, 2, v2")
    A("v_and_b32 v14, 3, v14")
    A("v_lshlrev_b32 v15, 3, v7")
    A("v_add_u32 v15, v15, v14")
    A("v_lshlrev_b32 v15, 8, v15")
    A("v_lshrrev_b32 v12, 4, v2")
    A("v_and_b32 v12, 1, v12")
    A("s_lshl_b32 s29, s28, 2")
    A("v_or_b32 v12, s29, v12")
    A("v_lshlrev_b32 v14, 1, v14")
    A("v_xor_b32 v12, v12, v14")
    A("v_lshlrev_b32 v12, 5, v12")
    A("v_add_u32 v12, v12, v15")
    A("v_and_b32 v14, 3, v2")
    A("v_lshlrev_b32 v14, 3, v14")
    A("v_add_u32 v12, v12, v14")
    A("v_xor_b32 v13, 64, v12")
    A("v_lshrrev_b32 v14, 4, v6")
    A("v_lshlrev_b32 v14, 10, v14")
    A("v_and_b32 v15, 15, v6")
    A("v_lshlrev_b32 v15, 4, v15")
    A("v_add_u32 v14, v14, v15")
    A("v_lshlrev_b32 v15, 8, v7")
    A("v_add_u32 v14, v14, v15")
    ACC = 128
    for i in range(64): A(f"v_mov_b32 v{ACC+i}, 0")
    FR = 32
    T = 16
    def read_list(st, j, fset):
        xs = ((2*st) % 5) * 16384; wsl = ((2*st+1) % 5) * 16384
        base = FR + fset*32
        xo, wo = xs, wsl + j*8192
        pre = []
        xr = [f"v{8+2*j+sx}" for sx in range(2)]
        if xo + 4096 + 4096 > 65535:
            for sx in range(2): pre.append(f"v_add_u32 v{T+sx}, {xo}, v{8+2*j+sx}")
            xr = [f"v{T+sx}" for sx in range(2)]; xo = 0
        wr = ["v12", "v13"]
        if wo + 4096 + 1024 + 2048 > 65535:
            for ft in range(2): pre.append(f"v_add_u32 v{T+2+ft}, {wo}, v{12+ft}")
            wr = [f"v{T+2+ft}" for ft in range(2)]; wo = 0
        L = []
        for sx in range(2):
            for t in range(2):
                wb = base + (sx*2+t)*4
                L.append(f"ds_read_b64_tr_b16 {v(wb,2)}, {wr[t]} offset:{wo + sx*4096}")
                L.append(f"ds_read_b64_tr_b16 {v(wb+2,2)}, {wr[t]} offset:{wo + sx*4096 + 1024}")
                L.append(f"ds_read_b128 {v(base+16+(sx*2+t)*4,4)}, {xr[sx]} offset:{xo + t*4096}")
        return pre, L
    def mfma_list(fset):
        base = FR + fset*32
        L = []
        for sx in range(2):
            for ft in range(2):
                for lt in range(2):
                    acc = ACC + (ft*2+lt)*16
                    L.append(f"v_mfma_f32_32x32x16_bf16 {v(acc,16)}, {v(base+(sx*2+ft)*4,4)}, {v(base+16+(sx*2+lt)*4,4)}, {v(acc,16)}")
        return L
    for n in (2, 4): issue2(n)
    stamp(A, 2)
    A("s_waitcnt vmcnt(12)")
    A("s_barrier")
    stamp(A, 3)
    if getattr(A, "gprio", 0): A(f"s_setprio {A.gprio}")
    pre, L = read_list(0, 0, 0)
    for l in pre + L: A(l)
    for st in range(8):
        for j in range(2):
            A("s_waitcnt lgkmcnt(0)")
            if j == 1 and st < 7:
                A(f"s_waitcnt vmcnt({4 if st <= 5 else 0})")
                A("s_barrier")
            if j == 0: pre, R = read_list(st, 1, 1)
            elif st < 7: pre, R = read_list(st+1, 0, 0)
            else: pre, R = [], []
            n = 2*st + 4 + j
            if n < 16 and n >= 5: setup, D = issue_parts(n)
            else: setup, D = [], []
            for l in pre + setup: A(l)
            M = mfma_list(j)
            for k in range(8):
                A(M[k])
                if k % 2 == 0 and D: A(D[k//2])
                for rr in R[2*k:2*k+2]: A(rr)
    stamp(A, 4)
    if getattr(A, "gprio", 0): A(f"s_setprio {getattr(A, 'eprio', 0)}")
    A("s_nop 7")
    A("s_nop 7")
    A("s_nop 7")
    A(f"s_mov_b32 s30, 0x{(LOG2E | 0x80000000):x}")
    A("s_mov_b32 s31, 0xffff0000")
    A("s_lshl_b32 s32, s10, 1")
    A("s_add_u32 s32, s32, s19")
    A("s_mul_i32 s32, s32, 56")
    A("s_lshl_b32 s33, s12, 2")
    A("s_add_u32 s32, s32, s33")
    A("s_lshl_b32 s33, s28, 1")
    A("s_add_u32 s32, s32, s33")
    A("s_lshl_b32 s32, s32, 12")
    srd_off(A, 36, 4, 5, "s32", 8192)
    A("s_mov_b32 s34, 4096")
    pk = getattr(A, "epk", 0)
    if pk:
        A("s_mov_b32 s60, s30")
        A("s_mov_b32 s61, s30")
        A("s_mov_b32 s62, 1.0")
        A("s_mov_b32 s63, 1.0")
    for p in range(2):
        for lt in range(4):
            o = 32 + (p*4+lt)*4
            lt2, sx = lt >> 1, lt & 1
            prs = []
            for pr in range(4):
                acc = ACC + (p*2+lt2)*16 + 8*sx
                prs.append((acc+2*pr, o+pr, 16+2*pr))
            for (x0, od, t) in prs: A(f"v_cvt_pk_bf16_f32 v{od}, v{x0}, v{x0+1}")
            for (x0, od, t) in prs:
                A(f"v_lshlrev_b32 v{x0}, 16, v{od}")
                A(f"v_and_b32 v{x0+1}, s31, v{od}")
            for (x0, od, t) in prs:
                if pk: A(f"v_pk_mul_f32 {v(t,2)}, {v(x0,2)}, s[60:61]")
                else:
                    A(f"v_mul_f32 v{t}, s30, v{x0}")
                    A(f"v_mul_f32 v{t+1}, s30, v{x0+1}")
            for (x0, od, t) in prs:
                A(f"v_exp_f32 v{t}, v{t}")
                A(f"v_exp_f32 v{t+1}, v{t+1}")
            for (x0, od, t) in prs:
                if pk: A(f"v_pk_add_f32 {v(t,2)}, {v(t,2)}, s[62:63]")
                else:
                    A(f"v_add_f32 v{t}, 1.0, v{t}")
                    A(f"v_add_f32 v{t+1}, 1.0, v{t+1}")
            for (x0, od, t) in prs:
                A(f"v_rcp_f32 v{t}, v{t}")
                A(f"v_rcp_f32 v{t+1}, v{t+1}")
            for (x0, od, t) in prs:
                if pk: A(f"v_pk_mul_f32 {v(t,2)}, {v(t,2)}, {v(x0,2)}")
                else:
                    A(f"v_mul_f32 v{t}, v{t}, v{x0}")
                    A(f"v_mul_f32 v{t+1}, v{t+1}, v{x0+1}")
            for (x0, od, t) in prs: A(f"v_cvt_pk_bf16_f32 v{od}, v{t}, v{t+1}")
            A(f"buffer_store_dwordx4 {v(o,4)}, v14, s[36:39], {'0' if p == 0 else 's34'} offen offset:{lt2*2048 + sx*512}" + getattr(A, "hst", ""))
    stamp(A, 5)
    if getattr(A, "wbl2", False):
        A("s_waitcnt vmcnt(0)")
        A("s_barrier")
        A("s_cmp_lg_u32 s11, 0")
        A(f"s_cbranch_scc1 {endlabel}")
        A("buffer_wbl2 sc1")
        A("s_waitcnt vmcnt(0)")
    A(f"s_branch {endlabel}")
```

```python
from asmlib import *
LOG2E = 0x3fb8aa3b

def gen_side(A, endlabel):
    A.c("==== side role ====")
    A(f"s_load_dwordx2 s[4:5], s[0:1], {KA['ws']}")
    A(f"s_load_dwordx2 s[6:7], s[0:1], {KA['u']}")
    A(f"s_load_dwordx2 s[8:9], s[0:1], {KA['w2']}")
    A(f"s_load_dwordx2 s[34:35], s[0:1], {KA['gate_w']}")
    A("v_lshrrev_b32 v1, 6, v0")
    A("v_and_b32 v2, 63, v0")
    A("s_sub_u32 s10, s2, 224")
    A("v_readfirstlane_b32 s11, v1")
    A("v_lshlrev_b32 v3, 4, v2")
    A("s_waitcnt lgkmcnt(0)")
    A("s_lshl_b32 s12, s10, 6")
    A("s_lshl_b32 s13, s11, 4")
    A("s_add_u32 s12, s12, s13")
    A("s_lshl_b32 s13, s12, 10")
    srd_off(A, 20, 6, 7, "s13", 16*1024)
    srd(A, 24, 34, 35, 1024)
    A("buffer_load_dwordx4 v[8:11], v3, s[24:27], 0 offen")
    for n in range(16):
        A(f"s_mov_b32 s14, {n*1024}")
        A(f"buffer_load_dwordx4 {v(32+4*n,4)}, v3, s[20:23], s14 offen")
    now2 = A.label("now2")
    A("s_cmp_ge_u32 s10, 28")
    A(f"s_cbranch_scc1 {now2}")
    srd(A, 28, 8, 9, 1792*1024)
    srd_off(A, 36, 4, 5, WS_W2F, 1792*1024)
    A("v_lshrrev_b32 v4, 3, v2")
    A("v_lshlrev_b32 v4, 10, v4")
    A("v_and_b32 v5, 7, v2")
    A("v_lshlrev_b32 v5, 4, v5")
    A("v_add_u32 v4, v4, v5")
    A("s_lshl_b32 s15, s10, 4")
    A("s_lshl_b32 s16, s11, 2")
    A("s_add_u32 s15, s15, s16")
    A("s_lshl_b32 s17, s11, 14")
    for n in range(4):
        A(f"s_add_u32 s16, s15, {n}")
        A("s_and_b32 s18, s16, 7")
        A("s_lshr_b32 s19, s16, 3")
        A("s_lshl_b32 s40, s19, 15")
        A("s_lshl_b32 s41, s18, 7")
        A("s_add_u32 s40, s40, s41")
        A("s_mul_i32 s41, s18, 56")
        A("s_add_u32 s41, s41, s19")
        A(f"s_lshl_b32 s{44+n}, s41, 12")
        A(f"s_add_u32 m0, s17, {n*4096}")
        for q in range(4):
            A(f"s_add_u32 s41, s40, {q*(8192-1024)}")
            A(f"buffer_load_dwordx4 v4, s[28:31], s41 offen offset:{q*1024} lds")
    A("v_lshrrev_b32 v5, 5, v2")
    A("v_lshlrev_b32 v5, 4, v5")
    A("v_lshrrev_b32 v6, 4, v2")
    A("v_and_b32 v6, 1, v6")
    A("v_lshlrev_b32 v6, 2, v6")
    A("v_add_u32 v5, v5, v6")
    A("v_lshrrev_b32 v6, 2, v2")
    A("v_and_b32 v6, 3, v6")
    A("v_add_u32 v5, v5, v6")
    A("v_lshlrev_b32 v5, 7, v5")
    A("v_and_b32 v6, 3, v2")
    A("v_lshlrev_b32 v6, 4, v6")
    A("v_add_u32 v5, v5, v6")
    A("v_add_u32 v5, s17, v5")
    A("s_waitcnt vmcnt(0)")
    for n in range(4):
        for dt in range(4):
            o = n*4096 + 64*(dt >> 1) + 8*(dt & 1)
            A(f"ds_read_b64_tr_b16 {v(96+(n*4+dt)*4,2)}, v5 offset:{o}")
            A(f"ds_read_b64_tr_b16 {v(96+(n*4+dt)*4+2,2)}, v5 offset:{o+1024}")
        if n == 1: A("s_waitcnt lgkmcnt(0)")
    A("s_waitcnt lgkmcnt(0)")
    for n in range(4):
        for dt in range(4):
            A(f"buffer_store_dwordx4 {v(96+(n*4+dt)*4,4)}, v3, s[36:39], s{44+n} offen offset:{dt*1024}" + getattr(A, "hst", ""))
    A(f"{now2}:")
    A("s_waitcnt vmcnt(16)" if False else "s_waitcnt vmcnt(0)")
    A("s_mov_b32 s31, 0xffff0000")
    for k in range(4):
        A(f"v_lshlrev_b32 v{16+2*k}, 16, v{8+k}")
        A(f"v_and_b32 v{17+2*k}, s31, v{8+k}")
    for n in range(16):
        src = 32 + 4*n
        for k in range(4):
            A(f"v_lshlrev_b32 v24, 16, v{src+k}")
            A(f"v_and_b32 v25, s31, v{src+k}")
            A(f"v_mul_f32 v24, v24, v{16+2*k}")
            A(f"v_mul_f32 v25, v25, v{17+2*k}")
            A(f"v_cvt_pk_bf16_f32 v26, v24, v25")
            A(f"v_lshlrev_b32 v24, 16, v26")
            A(f"v_and_b32 v25, s31, v26")
            if k == 0:
                A(f"v_add_f32 v{160+n}, v24, v25")
            else:
                A(f"v_add_f32 v24, v24, v25")
                A(f"v_add_f32 v{160+n}, v{160+n}, v24")
    for sh in (1, 2, 4, 8):
        for n in range(16):
            A(f"v_add_f32_dpp v{160+n}, v{160+n}, v{160+n} row_shr:{sh} row_mask:0xf bank_mask:0xf bound_ctrl:0")
    for n in range(16):
        A(f"v_add_f32_dpp v{160+n}, v{160+n}, v{160+n} row_bcast:15 row_mask:0xa bank_mask:0xf")
    for n in range(16):
        A(f"v_add_f32_dpp v{160+n}, v{160+n}, v{160+n} row_bcast:31 row_mask:0xc bank_mask:0xf")
    A("v_mov_b32 v24, 0")
    A("s_nop 1")
    for n in range(16):
        A(f"v_readlane_b32 s{44+(n%4)}, v{160+n}, 63")
        A("s_nop 3")
        A(f"v_writelane_b32 v24, s{44+(n%4)}, {n}")
    A("v_cvt_pk_bf16_f32 v24, v24, v24")
    A("v_and_b32 v24, s31, v24")
    A(f"v_mul_f32 v24, 0x{(LOG2E | 0x80000000):x}, v24")
    A("v_exp_f32 v24, v24")
    A("s_nop 0")
    A("v_add_f32 v24, 1.0, v24")
    A("v_rcp_f32 v24, v24")
    A("s_nop 0")
    A("v_cvt_pk_bf16_f32 v24, v24, v24")
    A("v_and_b32 v24, s31, v24")
    A("s_lshl_b32 s13, s12, 2")
    A(f"s_add_u32 s13, s13, {WS_G}")
    srd_off(A, 20, 4, 5, "s13", 64)
    A("v_lshlrev_b32 v25, 2, v2")
    A("buffer_store_dword v24, v25, s[20:23], 0 offen" + getattr(A, "hst", ""))
    A(f"s_branch {endlabel}")
```

```python
from asmlib import *
LOG2E = 0x3fb8aa3b
INV2PI = 0x3e22f983
UB = 512; CS = 4160; UCH = 4*CS
KB = 34048; KCH = 4608
FB = 43264; FCH = 4224
PT = 51712
RED = 59904
F2K = 76288

def cexp(A, dre, dim, alpha, beta, t, tmp):
    A(f"v_mul_f32 v{tmp}, {t}, v{alpha}")
    A(f"v_mul_f32 v{tmp+1}, {t}, v{beta}")
    A(f"v_exp_f32 v{tmp}, v{tmp}")
    A(f"v_fract_f32 v{tmp+1}, v{tmp+1}")
    A(f"v_cos_f32 v{dre}, v{tmp+1}")
    A(f"v_sin_f32 v{dim}, v{tmp+1}")
    A("s_nop 0")
    A(f"v_mul_f32 v{dre}, v{dre}, v{tmp}")
    A(f"v_mul_f32 v{dim}, v{dim}, v{tmp}")

def cmul(A, dre, dim, are, aim, bre, bim, tmp):
    A(f"v_mul_f32 v{tmp}, v{aim}, v{bim}")
    A(f"v_mul_f32 v{tmp+1}, v{aim}, v{bre}")
    A(f"v_fma_f32 v{dre}, v{are}, v{bre}, -v{tmp}")
    A(f"v_fma_f32 v{dim}, v{are}, v{bim}, v{tmp+1}")

def gen_ssm(A, endlabel):
    A.c("==== SSM role ====")
    for i, n in enumerate(["ws", "u", "A_re", "A_im", "B_re", "B_im", "C_re", "C_im", "log_dt", "Dskip"]):
        A(f"s_load_dwordx2 s[{4+2*i}:{5+2*i}], s[0:1], {KA[n]}")
    A(f"s_load_dwordx2 s[58:59], s[0:1], {KA['dbg']}")
    A("v_lshrrev_b32 v1, 6, v0")
    A("v_and_b32 v2, 63, v0")
    A("s_sub_u32 s24, s2, 256")
    A("v_readfirstlane_b32 s25, v1")
    A("s_and_b32 s26, s24, 7")
    A("s_lshr_b32 s27, s24, 3")
    A("s_lshl_b32 s26, s26, 6")
    A("s_lshl_b32 s27, s27, 1")
    A("s_add_u32 s26, s26, s27")
    A("s_lshr_b32 s27, s25, 1")
    A("s_and_b32 s28, s25, 1")
    A("s_add_u32 s29, s26, s27")
    A("s_lshl_b32 s30, s29, 8")
    A("s_lshl_b32 s31, s28, 7")
    A("s_add_u32 s30, s30, s31")
    A("v_lshlrev_b32 v3, 1, v2")
    A("v_add_u32 v3, s30, v3")
    A("s_lshl_b32 s31, s26, 1")
    A("s_waitcnt lgkmcnt(0)")
    A("s_add_u32 s20, s20, s31\ns_addc_u32 s21, s21, 0")
    A("s_add_u32 s22, s22, s31\ns_addc_u32 s23, s23, 0")
    A("s_load_dword s32, s[20:21], 0")
    A("s_load_dword s33, s[22:23], 0")
    A("s_and_b32 s34, s24, 7")
    A("s_lshr_b32 s35, s24, 3")
    if getattr(A, "map47", 0):
        A("s_and_b32 s48, s34, 1")
        A("s_lshr_b32 s34, s34, 1")
        A("s_lshl_b32 s34, s34, 3")
        A("s_and_b32 s47, s35, 7")
        A("s_add_u32 s34, s34, s47")
        A("s_lshr_b32 s35, s35, 3")
        A("s_lshl_b32 s48, s48, 2")
        A("s_add_u32 s35, s35, s48")
    else:
        A("s_lshl_b32 s34, s34, 2")
        A("s_and_b32 s47, s35, 3")
        A("s_add_u32 s34, s34, s47")
        A("s_lshr_b32 s35, s35, 2")
    A("s_lshl_b32 s47, s34, 16")
    A("s_lshl_b32 s48, s25, 14")
    A("s_add_u32 s47, s47, s48")
    A("s_lshl_b32 s48, s35, 7")
    A("s_add_u32 s47, s47, s48")
    srd_off(A, 40, 6, 7, "s47", 15*1024 + 128)
    A("v_lshrrev_b32 v4, 3, v2")
    A("v_lshlrev_b32 v4, 10, v4")
    A("v_and_b32 v5, 7, v2")
    A("v_lshlrev_b32 v5, 4, v5")
    A("v_add_u32 v4, v4, v5")
    A("s_lshl_b32 s48, s25, 11")
    A(f"s_add_u32 s48, s48, {RED}")
    A("s_mov_b32 m0, s48")
    A(f"s_mov_b32 s49, {8192-1024}")
    A("buffer_load_dwordx4 v4, s[40:43], 0 offen lds")
    A("buffer_load_dwordx4 v4, s[40:43], s49 offen offset:1024 lds")
    for i in range(6):
        srd(A, 36, 8+2*i, 9+2*i, 512*128*2)
        A(f"buffer_load_ushort v{8+i}, v3, s[36:39], 0 offen")
    W = 200
    GA = 216
    A("v_and_b32 v6, 127, v0")
    A("v_lshlrev_b32 v6, 4, v6")
    A("v_lshrrev_b32 v7, 7, v0")
    A(f"v_mul_u32_u24 v7, {FCH}, v7")
    A(f"v_add_u32 v7, {FB}, v7")
    A("s_mov_b32 s46, 0xffff0000")
    for e in range(16):
        r = GA + e
        A(f"v_add_u32 v{r}, {e}, v6")
        A(f"v_cvt_f32_u32 v{r}, v{r}")
        A(f"v_cvt_pk_bf16_f32 v{r}, v{r}, v{r}")
        A(f"v_and_b32 v{r}, s46, v{r}")
        A(f"v_cvt_u32_f32 v{r}, v{r}")
        A(f"v_lshl_add_u32 v{r}, v{r}, 1, v7")
    A("v_mov_b32 v232, 0\nv_mov_b32 v233, 0\nv_mov_b32 v234, 0\nv_mov_b32 v235, 0")
    A("v_lshrrev_b32 v14, 5, v0")
    A(f"v_mul_u32_u24 v14, {KCH}, v14")
    A("v_and_b32 v15, 31, v0")
    A("v_lshlrev_b32 v15, 4, v15")
    A("v_add_u32 v14, v14, v15")
    A(f"v_add_u32 v14, {KB}, v14")
    A("v_subrev_u32 v15, 64, v0")
    A("v_lshrrev_b32 v16, 3, v15")
    A(f"v_mul_u32_u24 v16, {UCH}, v16")
    A("v_lshrrev_b32 v17, 1, v15")
    A("v_and_b32 v17, 3, v17")
    A(f"v_mul_u32_u24 v17, {CS}, v17")
    A("v_add_u32 v16, v16, v17")
    A("v_and_b32 v17, 1, v15")
    A("v_lshlrev_b32 v17, 4, v17")
    A("v_add_u32 v16, v16, v17")
    A(f"v_add_u32 v16, {UB+4096}, v16")
    A("v_cmp_gt_u32 vcc, 64, v0")
    A("s_nop 1")
    A("v_cndmask_b32 v14, v16, v14, vcc")
    A("v_cmp_gt_u32 vcc, 80, v0")
    A("s_and_saveexec_b64 s[44:45], vcc")
    pz = A.label("pz")
    A(f"s_cbranch_execz {pz}")
    A("ds_write_b128 v14, v[232:235]")
    A(f"{pz}:")
    A("s_mov_b64 exec, s[44:45]")
    A("v_lshrrev_b32 v14, 4, v2")
    A("v_lshlrev_b32 v15, 10, v14")
    A("v_lshrrev_b32 v16, 2, v2")
    A("v_and_b32 v16, 3, v16")
    A("v_lshlrev_b32 v16, 7, v16")
    A("v_add_u32 v15, v15, v16")
    A("v_and_b32 v16, 3, v2")
    A("v_lshlrev_b32 v16, 3, v16")
    A("v_add_u32 v15, v15, v16")
    A("s_lshl_b32 s48, s25, 5")
    A(f"s_add_u32 s48, s48, {RED}")
    A("v_add_u32 v15, s48, v15")
    A("v_and_b32 v16, 15, v2")
    A("v_lshlrev_b32 v16, 12, v16")
    A("v_lshlrev_b32 v14, 4, v14")
    A("v_add_u32 v16, v16, v14")
    A("s_lshl_b32 s47, s35, 18")
    A("s_lshl_b32 s48, s25, 16")
    A("s_add_u32 s47, s47, s48")
    A("s_lshl_b32 s48, s34, 7")
    A("s_add_u32 s47, s47, s48")
    A(f"s_add_u32 s47, s47, {WS_UT}")
    srd_off(A, 40, 4, 5, "s47", 16*4096)
    srd(A, 60, 58, 59, 256)
    A("s_waitcnt vmcnt(6)")
    A("s_barrier")
    for hf in range(2):
        for k in range(2):
            A(f"ds_read_b64_tr_b16 {v(184+hf*4+k*2,2)}, v15 offset:{hf*4096 + k*512}")
    A("s_waitcnt lgkmcnt(0)")
    for hf in range(2):
        A(f"buffer_store_dwordx4 {v(184+hf*4,4)}, v16, s[40:43], 0 offen offset:{hf*64} sc1")
    A("s_waitcnt lgkmcnt(0)")
    A("s_lshl_b32 s47, s27, 4")
    A("s_lshr_b32 s32, s32, s47")
    A("s_lshl_b32 s32, s32, 16")
    A("s_lshr_b32 s33, s33, s47")
    A("s_lshl_b32 s33, s33, 16")
    A("v_mov_b32 v14, s32")
    A(f"v_mul_f32 v14, 0x{LOG2E:x}, v14")
    A("v_exp_f32 v14, v14")
    A("s_nop 0")
    A("v_cvt_pk_bf16_f32 v14, v14, v14")
    A("v_and_b32 v14, s46, v14")
    A("s_waitcnt vmcnt(2)")
    stamp(A, 3)
    for i in range(6): A(f"v_lshlrev_b32 v{8+i}, 16, v{8+i}")
    A("v_mul_f32 v20, v14, v8")
    A("v_mul_f32 v21, v14, v9")
    A(f"v_mul_f32 v20, 0x{LOG2E:x}, v20")
    A(f"v_mul_f32 v21, 0x{INV2PI:x}, v21")
    A("v_mul_f32 v10, v14, v10")
    A("v_mul_f32 v11, v14, v11")
    cmul(A, 22, 23, 12, 13, 10, 11, 16)
    A("s_mov_b32 s48, 0x44000000")
    A("s_mov_b32 s49, 0x45000000")
    cexp(A, 24, 25, 20, 21, "s48", 16)
    cexp(A, 26, 27, 20, 21, "4.0", 16)
    cexp(A, 28, 29, 20, 21, "s49", 16)
    A("v_mul_f32 v28, v28, v22")
    A("v_fma_f32 v28, -v29, v23, v28")
    A("s_lshl_b32 s50, s27, 12")
    A("s_lshl_b32 s51, s28, 11")
    A("s_add_u32 s50, s50, s51")
    A(f"s_add_u32 s50, s50, {PT}")
    A("v_lshlrev_b32 v15, 5, v2")
    A("v_add_u32 v15, s50, v15")
    A("ds_write_b128 v15, v[20:23]")
    A("ds_write_b128 v15, v[24:27] offset:16")
    for sh in (1, 2, 4, 8):
        A("s_nop 1")
        A(f"v_add_f32_dpp v28, v28, v28 row_shr:{sh} row_mask:0xf bank_mask:0xf bound_ctrl:0")
    A("s_nop 1")
    A("v_add_f32_dpp v28, v28, v28 row_bcast:15 row_mask:0xa bank_mask:0xf")
    A("s_nop 1")
    A("v_add_f32_dpp v28, v28, v28 row_bcast:31 row_mask:0xc bank_mask:0xf")
    A("s_lshl_b32 s51, s25, 2")
    A(f"s_add_u32 s51, s51, {F2K}")
    A("v_mov_b32 v29, s51")
    A("s_mov_b64 s[44:45], exec")
    A("s_mov_b32 exec_lo, 0")
    A("s_mov_b32 exec_hi, 0x80000000")
    A("ds_write_b32 v29, v28")
    A("s_mov_b64 exec, s[44:45]")
    A("v_and_b32 v16, 15, v2")
    A("v_lshrrev_b32 v17, 4, v2")
    A("v_lshrrev_b32 v18, 2, v16")
    A("v_lshlrev_b32 v18, 3, v18")
    A("v_and_b32 v19, 3, v16")
    A("v_add_u32 v18, v18, v19")
    A("v_cvt_f32_u32 v18, v18")
    A("v_lshlrev_b32 v19, 5, v16")
    A("v_cvt_f32_u32 v19, v19")
    A("v_lshlrev_b32 v15, 7, v17")
    A("v_add_u32 v15, s50, v15")
    FA = 96
    for i in range(32): A(f"v_mov_b32 v{FA+i}, 0")
    PR = 32
    YA = 64
    XB = 72
    A("s_waitcnt lgkmcnt(0)")
    pk = getattr(A, "pk", 0)
    TY, TP, TE, TF, TT = 128, 136, 144, 160, 176
    def cmul4(dst, a, b):
        if pk:
            for m in range(4):
                A(f"v_pk_mul_f32 {v(TT+2*m,2)}, {v(a(m),2)}, {v(b(m),2)} op_sel:[1,1] op_sel_hi:[1,0]")
            for m in range(4):
                A(f"v_pk_fma_f32 {v(dst(m),2)}, {v(a(m),2)}, {v(b(m),2)}, {v(TT+2*m,2)} op_sel:[0,0,0] op_sel_hi:[0,1,1] neg_lo:[0,0,1]")
        else:
            for m in range(4):
                A(f"v_mul_f32 v{TT+2*m}, v{a(m)+1}, v{b(m)+1}")
                A(f"v_mul_f32 v{TT+2*m+1}, v{a(m)+1}, v{b(m)}")
            for m in range(4):
                A(f"v_fma_f32 v{dst(m)}, v{a(m)}, v{b(m)}, -v{TT+2*m}")
                A(f"v_fma_f32 v{dst(m)+1}, v{a(m)}, v{b(m)+1}, v{TT+2*m+1}")
    kloop = getattr(A, "kloop", 1)
    def rd_lo():
        for m in range(4): A(f"ds_read_b128 {v(PR+8*m,4)}, v15 offset:{m*32}")
    def rd_hi():
        for m in range(4): A(f"ds_read_b128 {v(PR+8*m+4,4)}, v15 offset:{m*32 + 16}")
    rd_lo(); rd_hi()
    A("s_and_b32 s47, s24, 7")
    A("s_lshl_b32 s47, s47, 5")
    A("v_mov_b32 v192, s47")
    A("s_mov_b32 s47, 0")
    kl = A.label("kgen")
    if kloop: A(f"{kl}:")
    for ks in range(1 if kloop else 4):
        def signal():
            stamp(A, 11)
            A("s_waitcnt vmcnt(0)")
            stamp(A, 10)
            A("s_barrier")
            sk = A.label("sig")
            A("s_cmp_lg_u32 s25, 0")
            A(f"s_cbranch_scc1 {sk}")
            A("s_lshl_b32 s48, s35, 5")
            A("v_mov_b32 v194, s48")
            A("v_mov_b32 v195, 1")
            A("s_mov_b64 s[44:45], exec")
            A("s_mov_b64 exec, 1")
            A("buffer_atomic_add v195, v194, s[60:63], 0 offen sc1")
            A("s_mov_b64 exec, s[44:45]")
            A(f"{sk}:")
        if kloop:
            skp = A.label("nosig")
            A("s_cmp_lg_u32 s47, 1")
            A(f"s_cbranch_scc1 {skp}")
            signal()
            A(f"{skp}:")
        elif ks == 1: signal()
        if kloop:
            skp = A.label("nopoll")
            A("s_cmp_lg_u32 s47, 3")
            A(f"s_cbranch_scc1 {skp}")
            A("buffer_load_dword v193, v192, s[60:63], 0 offen sc1")
            A(f"{skp}:")
        elif ks == 3:
            A("buffer_load_dword v193, v192, s[60:63], 0 offen sc1")
        A("v_add_u32 v15, 512, v15")
        A("s_waitcnt lgkmcnt(4)")
        P = lambda m: PR + 8*m
        for m in range(4):
            if pk:
                A(f"v_pk_mul_f32 {v(TE+2*m,2)}, v[18:19], {v(P(m),2)} op_sel:[0,0] op_sel_hi:[0,1]")
                A(f"v_pk_mul_f32 {v(TF+2*m,2)}, v[18:19], {v(P(m),2)} op_sel:[1,0] op_sel_hi:[1,1]")
            else:
                A(f"v_mul_f32 v{TE+2*m}, v18, v{P(m)}")
                A(f"v_mul_f32 v{TE+2*m+1}, v18, v{P(m)+1}")
                A(f"v_mul_f32 v{TF+2*m}, v19, v{P(m)}")
                A(f"v_mul_f32 v{TF+2*m+1}, v19, v{P(m)+1}")
        for T in (TE, TF):
            for m in range(4): A(f"v_fract_f32 v{T+2*m+1}, v{T+2*m+1}")
        for T, D in ((TF, TP), (TE, TY)):
            for m in range(4):
                A(f"v_exp_f32 v{T+2*m}, v{T+2*m}")
                A(f"v_cos_f32 v{D+2*m}, v{T+2*m+1}")
                A(f"v_sin_f32 v{D+2*m+1}, v{T+2*m+1}")
        for T, D in ((TF, TP), (TE, TY)):
            for m in range(4):
                if pk:
                    A(f"v_pk_mul_f32 {v(D+2*m,2)}, {v(D+2*m,2)}, {v(T+2*m,2)} op_sel:[0,0] op_sel_hi:[1,0]")
                else:
                    A(f"v_mul_f32 v{D+2*m}, v{D+2*m}, v{T+2*m}")
                    A(f"v_mul_f32 v{D+2*m+1}, v{D+2*m+1}, v{T+2*m}")
        cmul4(lambda m: TF+2*m, lambda m: TP+2*m, lambda m: P(m)+2)
        rd_lo()
        A("s_waitcnt lgkmcnt(4)")
        for m in range(4): A(f"v_cvt_pk_bf16_f32 v{YA+m}, v{TY+2*m}, v{TY+2*m+1}")
        cmul4(lambda m: TE+2*m, lambda m: TY+2*m, lambda m: P(m)+6)
        cur, oth = TF, TP
        for m in range(4): A(f"v_cvt_pk_bf16_f32 v{YA+4+m}, v{TE+2*m}, v{TE+2*m+1}")
        for r in range(4):
            for m in range(4): A(f"v_cvt_pk_bf16_f32 v{XB+4*r+m}, v{cur+2*m}, -v{cur+2*m+1}")
            if r < 3:
                cmul4(lambda m: oth+2*m, lambda m: cur+2*m, lambda m: P(m)+4)
                cur, oth = oth, cur
            if r == 2: rd_hi()
        A("s_nop 1")
        for c in range(2):
            for r in range(4):
                acc = FA + (c*4+r)*4
                A(f"v_mfma_f32_16x16x32_bf16 {v(acc,4)}, {v(YA+4*c,4)}, {v(XB+4*r,4)}, {v(acc,4)}")
    if kloop:
        A("s_add_u32 s47, s47, 1")
        A("s_cmp_lt_u32 s47, 4")
        A(f"s_cbranch_scc1 {kl}")
    stamp(A, 4)
    stamp(A, 12)
    pl = A.label("poll"); pd = A.label("polled")
    A("s_mov_b32 s53, 0")
    A(f"{pl}:")
    A("s_waitcnt vmcnt(0)")
    A("v_readfirstlane_b32 s47, v193")
    A("s_cmp_ge_u32 s47, 32")
    A(f"s_cbranch_scc1 {pd}")
    A("s_add_u32 s53, s53, 1")
    A("s_cmp_ge_u32 s53, 0x40000")
    A(f"s_cbranch_scc1 {pd}")
    A("s_sleep 8")
    A("buffer_load_dword v193, v192, s[60:63], 0 offen sc1")
    A(f"s_branch {pl}")
    A(f"{pd}:")
    stamp(A, 2)
    A("s_lshl_b32 s47, s29, 12")
    A(f"s_add_u32 s47, s47, {WS_UT}")
    srd_off(A, 40, 4, 5, "s47", 4096)
    A("v_and_b32 v192, 127, v0")
    A("v_lshlrev_b32 v192, 5, v192")
    A("v_subrev_u32 v193, 8, v192")
    A("v_max_i32 v193, 0, v193")
    A(f"buffer_load_dwordx4 {v(W,4)}, v192, s[40:43], 0 offen sc1")
    A(f"buffer_load_dwordx4 {v(W+4,4)}, v192, s[40:43], 0 offen offset:16 sc1")
    A(f"buffer_load_dwordx2 {v(W+8,2)}, v193, s[40:43], 0 offen sc1")
    A("s_nop 7")
    A("v_lshlrev_b32 v14, 4, v2")
    A("s_lshl_b32 s54, s25, 12")
    A(f"s_add_u32 s54, s54, {RED}")
    A("v_add_u32 v15, s54, v14")
    A("s_xor_b32 s55, s25, 1")
    A("s_lshl_b32 s55, s55, 12")
    A(f"s_add_u32 s55, s55, {RED}")
    A("v_add_u32 v16, s55, v14")
    h1 = A.label("h1"); hd = A.label("hd")
    A("s_cmp_eq_u32 s28, 1")
    A(f"s_cbranch_scc1 {h1}")
    for c in range(2):
        for rr in range(2):
            A(f"ds_write_b128 v15, {v(FA+(c*4+2+rr)*4,4)} offset:{(c*2+rr)*1024}")
            for k in range(4): A(f"v_mov_b32 v{64+(c*2+rr)*4+k}, v{FA+(c*4+rr)*4+k}")
    A(f"s_branch {hd}")
    A(f"{h1}:")
    for c in range(2):
        for rr in range(2):
            A(f"ds_write_b128 v15, {v(FA+(c*4+rr)*4,4)} offset:{(c*2+rr)*1024}")
            for k in range(4): A(f"v_mov_b32 v{64+(c*2+rr)*4+k}, v{FA+(c*4+2+rr)*4+k}")
    A(f"{hd}:")
    A("s_waitcnt lgkmcnt(0)")
    A("s_barrier")
    for t in range(4): A(f"ds_read_b128 {v(80+4*t,4)}, v16 offset:{t*1024}")
    A("s_lshl_b32 s51, s27, 3")
    A(f"s_add_u32 s51, s51, {F2K}")
    A("v_mov_b32 v29, s51")
    A("ds_read_b64 v[30:31], v29")
    A("s_waitcnt lgkmcnt(0)")
    for i in range(16): A(f"v_add_f32 v{64+i}, v{64+i}, v{80+i}")
    A("v_and_b32 v16, 15, v2")
    A("v_lshlrev_b32 v16, 6, v16")
    A("v_lshrrev_b32 v17, 4, v2")
    A("v_lshlrev_b32 v17, 4, v17")
    A("v_add_u32 v16, v16, v17")
    A(f"s_mul_i32 s56, s27, {FCH}")
    A("s_lshl_b32 s57, s28, 11")
    A("s_add_u32 s57, s57, s56")
    A(f"s_add_u32 s57, s57, {FB}")
    A("v_add_u32 v16, s57, v16")
    for rr in range(2):
        for c in range(2):
            t = 64 + (c*2+rr)*4
            A(f"v_cvt_pk_bf16_f32 v{32+rr*4+c*2}, v{t}, v{t+1}")
            A(f"v_cvt_pk_bf16_f32 v{32+rr*4+c*2+1}, v{t+2}, v{t+3}")
        A(f"ds_write_b128 v16, {v(32+rr*4,4)} offset:{rr*1024}")
    A("v_add_f32 v30, v30, v31")
    A("v_cvt_pk_bf16_f32 v30, v30, v30")
    A(f"s_add_u32 s56, s56, {FB+4096}")
    A("v_mov_b32 v29, s56")
    A("s_mov_b64 s[44:45], exec")
    A("s_mov_b64 exec, 1")
    A("ds_write_b16 v29, v30")
    A("s_mov_b64 exec, s[44:45]")
    A("s_waitcnt lgkmcnt(0)")
    A("s_barrier")
    for e in range(16):
        op = "ds_read_u16" if e % 2 == 0 else "ds_read_u16_d16_hi"
        A(f"{op} v{(32 if e % 2 == 0 else 40)+e//2}, v{GA+e}")
        if e == 11: A("s_waitcnt lgkmcnt(4)")
    A("v_and_b32 v16, 127, v0")
    A("v_lshlrev_b32 v16, 5, v16")
    A("v_lshrrev_b32 v17, 7, v0")
    A(f"v_mul_u32_u24 v17, {KCH}, v17")
    A("v_add_u32 v16, v16, v17")
    A("s_waitcnt lgkmcnt(0)")
    for k in range(8): A(f"v_or_b32 v{32+k}, v{32+k}, v{40+k}")
    A(f"ds_write_b128 v16, v[32:35] offset:{KB+512}")
    A(f"ds_write_b128 v16, v[36:39] offset:{KB+512+16}")
    A("s_waitcnt vmcnt(0)")
    A("v_and_b32 v14, 127, v0")
    A("v_cmp_eq_u32 vcc, 0, v14")
    A("s_mov_b32 s52, 0xffff")
    A(f"v_cndmask_b32 v{W+8}, v{W+8}, 0, vcc" if False else f"v_mov_b32 v20, 0")
    A(f"v_cndmask_b32 v{W+8}, v{W+8}, v20, vcc")
    A(f"v_cndmask_b32 v{W+9}, v{W+9}, v20, vcc")
    A("v_sub_u32 v14, 127, v14")
    A("v_lshlrev_b32 v14, 5, v14")
    A(f"s_mul_i32 s53, s27, {UCH}")
    A("v_add_u32 v14, s53, v14")
    def PRG(p): return W + p if p >= 0 else W + 10 + p
    Q = 128
    for c in range(4):
        for b in range(2):
            q = Q + (c*2+b)*4
            for k in range(4):
                j = 8*b + 7 - c - 2*k
                if j % 2:
                    p = (j-1)//2
                    A(f"v_alignbit_b32 v{q+k}, v{PRG(p)}, v{PRG(p)}, 16")
                else:
                    p = j//2
                    A(f"v_bfi_b32 v{q+k}, s52, v{PRG(p)}, v{PRG(p-1)}")
            A(f"ds_write_b128 v14, {v(q,4)} offset:{UB + c*CS + (1-b)*16}")
    A("s_waitcnt lgkmcnt(0)")
    A("s_barrier")
    stamp(A, 5)
    if getattr(A, "dump", False):
        dl = A.label("nodump")
        A("s_cmp_lg_u32 s24, 0")
        A(f"s_cbranch_scc1 {dl}")
        srd_off(A, 36, 4, 5, 0x2000000, 81920)
        A("v_lshlrev_b32 v14, 4, v0")
        for k in range(20):
            A(f"ds_read_b128 v[32:35], v14 offset:{k*4096}" if k < 16 else f"ds_read_b128 v[32:35], v13 offset:{(k-16)*4096}")
            if k == 15: A("v_add_u32 v13, 65536, v14")
            A("s_waitcnt lgkmcnt(0)")
            A(f"s_mov_b32 s58, {k*4096}")
            A("buffer_store_dwordx4 v[32:35], v14, s[36:39], s58 offen")
            A("s_waitcnt vmcnt(0)")
        A(f"{dl}:")
    A("v_and_b32 v16, 15, v2")
    A("v_lshrrev_b32 v17, 4, v2")
    A("v_lshlrev_b32 v18, 5, v16")
    A("v_lshlrev_b32 v19, 4, v17")
    A("v_add_u32 v18, v18, v19")
    A(f"s_mul_i32 s56, s27, {KCH}")
    A("s_lshl_b32 s57, s28, 8")
    A("s_sub_u32 s56, s56, s57")
    A(f"s_add_u32 s56, s56, {KB+480-192}")
    A("v_add_u32 v18, s56, v18")
    A("v_and_b32 v20, 3, v16")
    A("v_sub_u32 v20, 3, v20")
    A(f"v_mul_u32_u24 v20, {CS}, v20")
    A("v_add_u32 v20, v20, v19")
    A("v_lshrrev_b32 v21, 2, v16")
    A("v_lshlrev_b32 v21, 3, v21")
    A("v_sub_u32 v20, v20, v21")
    A(f"s_mul_i32 s56, s27, {UCH}")
    A("s_sub_u32 s56, s56, s57")
    A(f"s_add_u32 s56, s56, {UB+24}")
    A("v_add_u32 v19, s56, v20")
    CA = 32
    for i in range(32): A(f"v_mov_b32 v{CA+i}, 0")
    FS = 64
    def creads(rp, fs):
        b = FS + fs*64
        for sg in range(8):
            o = 4032 - 512*sg - 64*rp
            A(f"ds_read_b64 {v(b+4*sg,2)}, v19 offset:{o}")
            A(f"ds_read_b64 {v(b+4*sg+2,2)}, v19 offset:{o+8}")
            A(f"ds_read_b128 {v(b+32+4*sg,4)}, v18 offset:{192 + 512*sg - 64*rp}")
    def cmf(fs):
        b = FS + fs*64
        pairs = sorted([(sg, q) for q in range(8) for sg in range(q+1)], key=lambda p: (max(p[0], p[1]-p[0]), p[1]))
        return pairs, b
    creads(0, 0)
    for rp in range(4):
        fs = rp % 2
        if rp + 1 < 4:
            creads(rp+1, 1-fs)
            A("s_waitcnt lgkmcnt(15)")
        pairs, b = cmf(fs)
        if rp + 1 < 4:
            pass
        else:
            A("s_waitcnt lgkmcnt(0)")
        for (sg, q) in pairs:
            A(f"v_mfma_f32_16x16x32_bf16 {v(CA+4*q,4)}, {v(b+4*sg,4)}, {v(b+32+4*(q-sg),4)}, {v(CA+4*q,4)}")
    stamp(A, 6)
    A("s_nop 7")
    A("v_lshlrev_b32 v14, 4, v2")
    A("v_add_u32 v15, s54, v14")
    A("v_add_u32 v16, s55, v14")
    h1 = A.label("h1"); hd = A.label("hd")
    A("s_cmp_eq_u32 s28, 1")
    A(f"s_cbranch_scc1 {h1}")
    for t in range(4):
        A(f"ds_write_b128 v15, {v(CA+16+4*t,4)} offset:{t*1024}")
        for k in range(4): A(f"v_mov_b32 v{64+4*t+k}, v{CA+4*t+k}")
    A(f"s_branch {hd}")
    A(f"{h1}:")
    for t in range(4):
        A(f"ds_write_b128 v15, {v(CA+4*t,4)} offset:{t*1024}")
        for k in range(4): A(f"v_mov_b32 v{64+4*t+k}, v{CA+16+4*t+k}")
    A(f"{hd}:")
    A("s_waitcnt lgkmcnt(0)")
    A("s_barrier")
    for t in range(4): A(f"ds_read_b128 {v(80+4*t,4)}, v16 offset:{t*1024}")
    A("v_and_b32 v16, 15, v2")
    A("v_lshrrev_b32 v17, 4, v2")
    A("v_lshlrev_b32 v20, 5, v16")
    A("v_lshlrev_b32 v21, 3, v17")
    A("v_add_u32 v20, v20, v21")
    A(f"s_mul_i32 s56, s27, {UCH}")
    A("s_lshl_b32 s57, s28, 11")
    A("s_sub_u32 s56, s56, s57")
    A(f"s_add_u32 s56, s56, {UB + 4088 - 1536}")
    A("v_sub_u32 v21, s56, v20")
    for t in range(4): A(f"ds_read_b64 {v(100+2*t,2)}, v21 offset:{1536 - 512*t}")
    A("s_waitcnt lgkmcnt(0)")
    A("v_mov_b32 v22, s33")
    for t in range(4):
        for k in range(4): A(f"v_add_f32 v{64+4*t+k}, v{64+4*t+k}, v{80+4*t+k}")
        y = 64 + 4*t
        A(f"v_cvt_pk_bf16_f32 v24, v{y}, v{y+1}")
        A(f"v_cvt_pk_bf16_f32 v25, v{y+2}, v{y+3}")
        A(f"v_lshlrev_b32 v{y}, 16, v24")
        A(f"v_and_b32 v{y+1}, s46, v24")
        A(f"v_lshlrev_b32 v{y+2}, 16, v25")
        A(f"v_and_b32 v{y+3}, s46, v25")
        u0, u1 = 100+2*t, 101+2*t
        A(f"v_and_b32 v26, s46, v{u1}")
        A(f"v_lshlrev_b32 v27, 16, v{u1}")
        A(f"v_and_b32 v28, s46, v{u0}")
        A(f"v_lshlrev_b32 v29, 16, v{u0}")
        for k in range(4): A(f"v_mul_f32 v{26+k}, v{26+k}, v22")
        A("v_cvt_pk_bf16_f32 v24, v26, v27")
        A("v_cvt_pk_bf16_f32 v25, v28, v29")
        A("v_lshlrev_b32 v26, 16, v24")
        A("v_and_b32 v27, s46, v24")
        A("v_lshlrev_b32 v28, 16, v25")
        A("v_and_b32 v29, s46, v25")
        for k in range(4): A(f"v_add_f32 v{26+k}, v{26+k}, v{y+k}")
        A(f"v_cvt_pk_bf16_f32 v{112+2*t}, v26, v27")
        A(f"v_cvt_pk_bf16_f32 v{113+2*t}, v28, v29")
    A("s_lshl_b32 s56, s29, 12")
    A("s_lshl_b32 s57, s28, 11")
    A("s_add_u32 s56, s56, s57")
    A(f"s_add_u32 s56, s56, {WS_AT}")
    srd_off(A, 36, 4, 5, "s56", 2048)
    for t in range(4):
        A(f"buffer_store_dwordx2 {v(112+2*t,2)}, v20, s[36:39], 0 offen offset:{512*t}" + getattr(A, "hst", ""))
    stamp(A, 7)
    A(f"s_branch {endlabel}")
```

```python
from asmlib import *

def gen_kb(A, name="kb_kernel"):
    NSET = getattr(A, 'nset', 4)
    kernel_header(A, name)
    end = A.label("kb_end")
    A("s_cmp_ge_u32 s2, 256")
    A(f"s_cbranch_scc1 {end}")
    stamp(A, 0, real=True); stamp(A, 1)
    A(f"s_load_dwordx2 s[4:5], s[0:1], {KA['ws']}")
    A(f"s_load_dwordx2 s[6:7], s[0:1], {KA['out']}")
    A("v_lshrrev_b32 v1, 6, v0")
    A("v_and_b32 v2, 63, v0")
    A("s_and_b32 s8, s2, 7")
    A("v_readfirstlane_b32 s9, v1")
    A("s_lshr_b32 s10, s2, 3")
    A("s_and_b32 s11, s10, 3")
    A("s_lshl_b32 s8, s8, 2")
    A("s_add_u32 s8, s8, s11")
    A("s_lshr_b32 s10, s10, 2")
    A("v_lshlrev_b32 v3, 4, v2")
    A("s_mul_i32 s12, s9, 14")
    A("s_mul_i32 s13, s8, 56")
    A("s_add_u32 s13, s13, s12")
    A("s_lshl_b32 s13, s13, 12")
    A("s_mul_i32 s14, s10, 56")
    A("s_add_u32 s14, s14, s12")
    A("s_lshl_b32 s14, s14, 12")
    A(f"s_add_u32 s14, s14, {WS_W2F}")
    A("v_lshrrev_b32 v4, 3, v2")
    A("v_lshlrev_b32 v4, 12, v4")
    A("v_and_b32 v5, 7, v2")
    A("v_lshlrev_b32 v5, 4, v5")
    A("v_add_u32 v4, v4, v5")
    A("s_lshl_b32 s15, s10, 6")
    A("s_lshl_b32 s16, s9, 4")
    A("s_add_u32 s15, s15, s16")
    A("s_lshl_b32 s15, s15, 12")
    A("s_lshl_b32 s16, s8, 7")
    A("s_add_u32 s15, s15, s16")
    A(f"s_add_u32 s15, s15, {WS_AT}")
    A("v_and_b32 v5, 15, v2")
    A("v_lshlrev_b32 v6, 2, v5")
    A("s_lshl_b32 s17, s8, 8")
    A("s_lshl_b32 s18, s9, 6")
    A("s_add_u32 s17, s17, s18")
    A(f"s_add_u32 s17, s17, {WS_G}")
    A("s_waitcnt lgkmcnt(0)")
    srd_off(A, 20, 4, 5, "s13", 14*4096)
    srd_off(A, 24, 4, 5, "s14", 14*4096)
    srd_off(A, 28, 4, 5, "s15", 16*4096)
    srd_off(A, 32, 4, 5, "s17", 64)
    A("s_lshl_b32 s19, s9, 11")
    A("s_add_u32 s19, s19, 65536")
    A("s_mov_b32 m0, s19")
    A("s_mov_b32 s36, 32768")
    A("buffer_load_dwordx4 v4, s[28:31], 0 offen lds")
    A("s_add_u32 s19, s19, 1024")
    A("s_mov_b32 m0, s19")
    A("s_nop 0")
    A("buffer_load_dwordx4 v4, s[28:31], s36 offen lds")
    A("buffer_load_dword v7, v6, s[32:35], 0 offen")
    SET0 = 8
    def setreg(k, i): return SET0 + (k % NSET) * 32 + i * 4
    def issue_list(step):
        L = []
        for i in range(4):
            L.append(f"buffer_load_dwordx4 {v(setreg(step, i),4)}, v3, s[24:27], s{48+step%2} offen offset:{i*1024}")
            L.append(f"buffer_load_dwordx4 {v(setreg(step, 4+i),4)}, v3, s[20:23], s{48+step%2} offen offset:{i*1024}")
        return [f"s_mov_b32 s{48+step%2}, {step*4096}"], L
    for st in range(NSET-1):
        su, L = issue_list(st)
        for l in su + L: A(l)
    for i in range(64): A(f"v_accvgpr_write_b32 a{i}, 0")
    for st in range(14):
        last = min(st + NSET - 2, 13)
        A(f"s_waitcnt vmcnt({8*(last-st)})")
        if st == 0: stamp(A, 2)
        if st == 7: stamp(A, 3)
        nx = st + NSET - 1
        su, L = issue_list(nx) if nx < 14 else ([], [])
        for l in su: A(l)
        k = 0
        for dt in range(4):
            for lt in range(4):
                acc = (dt*4 + lt)*4
                A(f"v_mfma_f32_16x16x32_bf16 {a_(acc,4)}, {v(setreg(st,dt),4)}, {v(setreg(st,4+lt),4)}, {a_(acc,4)}")
                if k % 2 == 0 and L: A(L[k//2])
                k += 1
    stamp(A, 4)
    A("s_nop 7")
    A("s_nop 1")
    A("s_lshl_b32 s38, s9, 12")
    A("v_add_u32 v8, s38, v3")
    for lt in range(4):
        skip = A.label("skipw")
        A(f"s_cmp_eq_u32 s9, {lt}")
        A(f"s_cbranch_scc1 {skip}")
        for dt in range(4):
            acc = (dt*4 + lt)*4
            A(f"ds_write_b128 v8, {a_(acc,4)} offset:{lt*16384 + dt*1024}")
        A(f"{skip}:")
    for lt in range(4):
        skip = A.label("skipo")
        A(f"s_cmp_lg_u32 s9, {lt}")
        A(f"s_cbranch_scc1 {skip}")
        for dt in range(4):
            for r in range(4):
                A(f"v_accvgpr_read_b32 v{16+dt*4+r}, a{(dt*4+lt)*4+r}")
        A(f"{skip}:")
    A("s_waitcnt vmcnt(0) lgkmcnt(0)")
    A("s_barrier")
    A("s_lshl_b32 s38, s9, 14")
    A("v_add_u32 v8, s38, v3")
    for q in range(1, 4):
        A(f"s_add_u32 s39, s9, {q}")
        A("s_and_b32 s39, s39, 3")
        A("s_lshl_b32 s39, s39, 12")
        A(f"v_add_u32 v{8+q}, s39, v8")
    for q in range(1, 4):
        for dt in range(4):
            A(f"ds_read_b128 {v(32+(q-1)*16+dt*4,4)}, v{8+q} offset:{dt*1024}")
    A("v_lshrrev_b32 v12, 4, v2")
    A("v_lshlrev_b32 v13, 10, v12")
    A("v_lshrrev_b32 v14, 2, v2")
    A("v_and_b32 v14, 3, v14")
    A("v_lshlrev_b32 v14, 7, v14")
    A("v_add_u32 v13, v13, v14")
    A("v_and_b32 v14, 3, v2")
    A("v_lshlrev_b32 v14, 3, v14")
    A("v_add_u32 v13, v13, v14")
    A("s_lshl_b32 s38, s9, 5")
    A("s_add_u32 s38, s38, 65536")
    A("v_add_u32 v13, s38, v13")
    for dt in range(4):
        A(f"ds_read_b64_tr_b16 {v(80+dt*2,2)}, v13 offset:{(dt>>1)*4096 + (dt&1)*512}")
    A("s_waitcnt lgkmcnt(4)")
    for q in range(3):
        for i in range(16):
            A(f"v_add_f32 v{16+i}, v{16+i}, v{32+q*16+i}")
    A("v_sub_f32 v8, 1.0, v7")
    A("v_cvt_pk_bf16_f32 v8, v8, v8")
    A("v_and_b32 v8, 0xffff0000, v8")
    A("s_waitcnt lgkmcnt(0)")
    A("s_mov_b32 s40, 0xffff0000")
    for p in range(8):
        b0, b1 = 16+2*p, 17+2*p
        A(f"v_cvt_pk_bf16_f32 v9, v{b0}, v{b1}")
        A(f"v_lshlrev_b32 v{b0}, 16, v9")
        A(f"v_and_b32 v{b1}, s40, v9")
        A(f"v_lshlrev_b32 v10, 16, v{80+p}")
        A(f"v_and_b32 v11, s40, v{80+p}")
        A(f"v_mul_f32 v10, v7, v10")
        A(f"v_mul_f32 v11, v7, v11")
        A(f"v_mul_f32 v{b0}, v8, v{b0}")
        A(f"v_mul_f32 v{b1}, v8, v{b1}")
        A(f"v_cvt_pk_bf16_f32 v9, v10, v11")
        A(f"v_cvt_pk_bf16_f32 v12, v{b0}, v{b1}")
        A(f"v_lshlrev_b32 v10, 16, v9")
        A(f"v_and_b32 v11, s40, v9")
        A(f"v_lshlrev_b32 v{b0}, 16, v12")
        A(f"v_and_b32 v{b1}, s40, v12")
        A(f"v_add_f32 v10, v10, v{b0}")
        A(f"v_add_f32 v11, v11, v{b1}")
        A(f"v_cvt_pk_bf16_f32 v{88+p}, v10, v11")
    A("v_and_b32 v5, 15, v2")
    A("v_lshlrev_b32 v5, 10, v5")
    A("v_lshrrev_b32 v12, 4, v2")
    A("v_lshlrev_b32 v12, 4, v12")
    A("v_add_u32 v5, v5, v12")
    A("s_lshl_b32 s38, s8, 16")
    A("s_lshl_b32 s39, s9, 14")
    A("s_add_u32 s38, s38, s39")
    A("s_lshl_b32 s39, s10, 7")
    A("s_add_u32 s38, s38, s39")
    srd(A, 44, 6, 7, 2048*1024)
    A("buffer_store_dwordx4 v[88:91], v5, s[44:47], s38 offen")
    A("buffer_store_dwordx4 v[92:95], v5, s[44:47], s38 offen offset:64")
    if getattr(A, "stamps", False):
        A("s_waitcnt vmcnt(0)")
        stamp(A, 5); stamp(A, 6, real=True)
        stamp_flush(A, 7, "s4", "s5", wave_sgpr="s9", base=0x20000)
    A(f"{end}:")
    A("s_endpgm")
    return dict(name=name, vgpr=256+64, accum=256)
```

```python
import sys
from asmlib import *
from kb import gen_kb
from ka_gemm1 import gen_gemm1
from ka_side import gen_side
from ka_ssm import gen_ssm as gen_ssm2
from ka_ssm_v1 import gen_ssm as gen_ssm1
HDR = open("gated_mix__ssm_conv_s4__dense_activation_silu__prompt.s.ref").read().split("; Override launch geometry")[0]
def build(stamps=False, only=None, dump=False, opts={}):
    A = Asm(); A.stamps = stamps; A.dump = dump
    for k, val in opts.items(): setattr(A, k, val)
    A.lines.append(HDR.rstrip("\n"))
    if only in (None, "a"): A("; @launch kernel=ka_kernel grid=(512,1,1) block=(256,1,1) lds=81920")
    if only in (None, "b"): A("; @launch kernel=kb_kernel grid=(256,1,1) block=(256,1,1) lds=73728")
    A('.amdgcn_target "amdgcn-amd-amdhsa--gfx950"')
    A(".text")
    kernel_header(A, "ka_kernel")
    fin = "L_ka_fin"; end = "L_ka_end"
    A("s_cmp_ge_u32 s2, 512")
    A(f"s_cbranch_scc1 {end}")
    stamp(A, 0, real=True); stamp(A, 1)
    if stamps:
        A("v_lshrrev_b32 v1, 6, v0\ns_nop 0\nv_readfirstlane_b32 s96, v1")
    if getattr(A, "swap", 0):
        A("s_mov_b32 s3, s2")
        A("s_xor_b32 s2, s2, 256")
    A("s_cmp_ge_u32 s2, 256")
    A("s_cbranch_scc1 L_role_ssm")
    A("s_cmp_ge_u32 s2, 224")
    A("s_cbranch_scc1 L_role_side")
    if getattr(A, "nog1", 0): A(f"s_branch {end}")
    gen_gemm1(A, fin)
    A("L_role_side:")
    if getattr(A, "noside", 0): A(f"s_branch {end}")
    gen_side(A, fin)
    A("L_role_ssm:")
    if getattr(A, "nossm", 0): A(f"s_branch {end}")
    if getattr(A, "sprio", 0): A(f"s_setprio {A.sprio}")
    (gen_ssm1 if getattr(A, 'ssm1', 0) else gen_ssm2)(A, fin)
    A(f"{fin}:")
    if stamps:
        A("s_waitcnt vmcnt(0)")
        stamp(A, 8); stamp(A, 9, real=True)
        A("v_lshrrev_b32 v1, 6, v0") if False else None
        stamp_flush(A, 13, "s4", "s5", wave_sgpr="s96")
    A(f"{end}:")
    A("s_endpgm")
    kb = gen_kb(A)
    A('.section .rodata,"a"')
    kernel_desc(A, "ka_kernel", 256, 256)
    kernel_desc(A, kb["name"], kb["vgpr"], kb["accum"])
    return A.text()
if __name__ == "__main__":
    st = "st" in sys.argv
    only = "a" if "a" in sys.argv else ("b" if "b" in sys.argv else None)
    out = sys.argv[1]
    opts = {}
    for a in sys.argv[2:]:
        if "=" in a:
            k, val = a.split("=", 1)
            try: val = int(val)
            except ValueError: val = " " + val.replace("+", " ")
            opts[k] = val
    open(out, "w").write(build(st, only, "dump" in sys.argv, opts))
```

```python
from asmlib import *
from kb2 import flag_clear

LOG2E = 0x3fb8aa3b

def gen_gemm1(A, endlabel):
    A.c("==== GEMM1 role ====")
    A(f"s_load_dwordx2 s[4:5], s[0:1], {KA['ws']}")
    A(f"s_load_dwordx2 s[6:7], s[0:1], {KA['u']}")
    A(f"s_load_dwordx2 s[8:9], s[0:1], {KA['w1']}")
    A("v_lshrrev_b32 v1, 6, v0")
    A("v_and_b32 v2, 63, v0")
    A("s_and_b32 s10, s2, 7")
    A("v_readfirstlane_b32 s11, v1")
    A("s_lshr_b32 s12, s2, 3")
    if getattr(A, "map47", 0):
        A("s_and_b32 s13, s12, 3")
        A("s_lshr_b32 s14, s10, 1")
        A("s_lshl_b32 s14, s14, 2")
        A("s_and_b32 s15, s10, 1")
        A("s_mul_i32 s15, s15, 7")
        A("s_lshr_b32 s12, s12, 2")
        A("s_add_u32 s10, s14, s13")
        A("s_add_u32 s12, s12, s15")
        A("s_lshl_b32 s13, s13, 1")
    else:
        A("s_and_b32 s13, s12, 1")
        A("s_lshl_b32 s10, s10, 1")
        A("s_add_u32 s10, s10, s13")
        A("s_lshr_b32 s12, s12, 1")
        A("s_lshl_b32 s13, s13, 2")
    A("v_lshrrev_b32 v6, 3, v2")
    A("v_and_b32 v7, 7, v2")
    A("v_lshrrev_b32 v8, 1, v6")
    A("v_xor_b32 v7, v7, v8")
    A("v_lshlrev_b32 v7, 4, v7")
    A("v_lshlrev_b32 v6, 10, v6")
    A("v_add_u32 v3, v6, v7")
    A("v_xor_b32 v5, 64, v3")
    A("v_lshrrev_b32 v6, 4, v2")
    A("v_and_b32 v7, 15, v2")
    A("v_lshrrev_b32 v8, 1, v7")
    A("v_lshlrev_b32 v9, 1, v6")
    A("v_xor_b32 v8, v8, v9")
    A("v_lshlrev_b32 v8, 1, v8")
    A("v_and_b32 v7, 1, v7")
    A("v_or_b32 v8, v8, v7")
    A("v_lshlrev_b32 v8, 4, v8")
    A("v_mul_u32_u24 v6, 3584, v6")
    A("v_add_u32 v4, v6, v8")
    A("s_lshl_b32 s14, s11, 15")
    for q in range(4):
        A(f"s_add_u32 s{40+q}, s14, {q*(8192-1024)}")
    A("s_mul_i32 s14, s11, %d" % (16*3584))
    for q in range(4):
        A(f"s_add_u32 s{44+q}, s14, {q*(4*3584-1024)}")
    A("s_lshl_b32 s15, s11, 12")
    A("s_lshl_b32 s16, s10, 17")
    A("s_lshl_b32 s17, s12, 8")
    A(f"s_sub_u32 s18, {512*3584}, s17")
    A("s_waitcnt lgkmcnt(0)")
    srd_off(A, 20, 6, 7, "s16", 128*1024)
    A("s_add_u32 s24, s8, s17")
    A("s_addc_u32 s25, s9, 0")
    A("s_and_b32 s25, s25, 0xffff")
    A("s_mov_b32 s26, s18")
    A("s_mov_b32 s27, 0x20000")
    if getattr(A, "fused", 0): flag_clear(A, 4, 5, "s10", "s12", 36, 6)
    rot = getattr(A, "rot", 0)
    A("s_and_b32 s48, s2, 7")
    if rot < 2: A("s_mov_b32 s48, 0")
    if rot:
        A("s_add_u32 s48, s48, s13")
        A("s_add_u32 s48, s48, s12")
        A("s_and_b32 s48, s48, 7")
    A("s_mov_b32 s49, s48")
    def issue_parts(n):
        slot = (n % 5) * 16384
        setup = [f"s_add_u32 m0, s15, {slot}"]
        if n % 2 == 0:
            setup.append("s_lshl_b32 s54, s48, 7")
            setup += [f"s_add_u32 s{50+q}, s{40+q}, s54" for q in range(4)]
            setup += ["s_add_u32 s48, s48, 1", "s_and_b32 s48, s48, 7"]
            ins = [f"buffer_load_dwordx4 {'v3' if q % 2 == 0 else 'v5'}, s[20:23], s{50+q} offen offset:{q*1024} lds" for q in range(4)]
        else:
            setup.append(f"s_mul_i32 s54, s49, {64*3584}")
            setup += [f"s_add_u32 s{56+q}, s{44+q}, s54" for q in range(4)]
            setup += ["s_add_u32 s49, s49, 1", "s_and_b32 s49, s49, 7"]
            ins = [f"buffer_load_dwordx4 v4, s[24:27], s{56+q} offen offset:{q*1024} lds" for q in range(4)]
        return setup, ins
    def issue2(n):
        setup, ins = issue_parts(n)
        for l in setup + ins: A(l)
    for n in (0, 1, 3): issue2(n)
    A("s_and_b32 s19, s11, 1")
    A("s_lshr_b32 s28, s11, 1")
    A("v_and_b32 v6, 31, v2")
    A("v_lshrrev_b32 v7, 5, v2")
    A("v_lshrrev_b32 v8, 1, v6")
    A("v_and_b32 v8, 7, v8")
    A("v_xor_b32 v8, v8, v7")
    A("v_lshlrev_b32 v8, 4, v8")
    A("v_lshlrev_b32 v9, 7, v6")
    A("v_add_u32 v8, v8, v9")
    A("s_lshl_b32 s29, s19, 13")
    A("v_add_u32 v8, s29, v8")
    for js in range(1, 4): A(f"v_xor_b32 v{8+js}, {js*32}, v8")
    A("v_lshrrev_b32 v14, 2, v2")
    A("v_and_b32 v14, 3, v14")
    A("v_lshlrev_b32 v15, 3, v7")
    A("v_add_u32 v15, v15, v14")
    A("v_lshlrev_b32 v15, 8, v15")
    A("v_lshrrev_b32 v12, 4, v2")
    A("v_and_b32 v12, 1, v12")
    A("s_lshl_b32 s29, s28, 2")
    A("v_or_b32 v12, s29, v12")
    A("v_lshlrev_b32 v14, 1, v14")
    A("v_xor_b32 v12, v12, v14")
    A("v_lshlrev_b32 v12, 5, v12")
    A("v_add_u32 v12, v12, v15")
    A("v_and_b32 v14, 3, v2")
    A("v_lshlrev_b32 v14, 3, v14")
    A("v_add_u32 v12, v12, v14")
    A("v_xor_b32 v13, 64, v12")
    A("v_lshrrev_b32 v14, 4, v6")
    A("v_lshlrev_b32 v14, 10, v14")
    A("v_and_b32 v15, 15, v6")
    A("v_lshlrev_b32 v15, 4, v15")
    A("v_add_u32 v14, v14, v15")
    A("v_lshlrev_b32 v15, 8, v7")
    A("v_add_u32 v14, v14, v15")
    ACC = 128
    for i in range(64): A(f"v_mov_b32 v{ACC+i}, 0")
    FR = 32
    T = 16
    def read_list(st, j, fset):
        xs = ((2*st) % 5) * 16384; wsl = ((2*st+1) % 5) * 16384
        base = FR + fset*32
        xo, wo = xs, wsl + j*8192
        pre = []
        xr = [f"v{8+2*j+sx}" for sx in range(2)]
        if xo + 4096 + 4096 > 65535:
            for sx in range(2): pre.append(f"v_add_u32 v{T+sx}, {xo}, v{8+2*j+sx}")
            xr = [f"v{T+sx}" for sx in range(2)]; xo = 0
        wr = ["v12", "v13"]
        if wo + 4096 + 1024 + 2048 > 65535:
            for ft in range(2): pre.append(f"v_add_u32 v{T+2+ft}, {wo}, v{12+ft}")
            wr = [f"v{T+2+ft}" for ft in range(2)]; wo = 0
        L = []
        for sx in range(2):
            for t in range(2):
                wb = base + (sx*2+t)*4
                L.append(f"ds_read_b64_tr_b16 {v(wb,2)}, {wr[t]} offset:{wo + sx*4096}")
                L.append(f"ds_read_b64_tr_b16 {v(wb+2,2)}, {wr[t]} offset:{wo + sx*4096 + 1024}")
                L.append(f"ds_read_b128 {v(base+16+(sx*2+t)*4,4)}, {xr[sx]} offset:{xo + t*4096}")
        return pre, L
    def mfma_list(fset):
        base = FR + fset*32
        L = []
        for sx in range(2):
            for ft in range(2):
                for lt in range(2):
                    acc = ACC + (ft*2+lt)*16
                    L.append(f"v_mfma_f32_32x32x16_bf16 {v(acc,16)}, {v(base+(sx*2+ft)*4,4)}, {v(base+16+(sx*2+lt)*4,4)}, {v(acc,16)}")
        return L
    for n in (2, 4): issue2(n)
    stamp(A, 2)
    A("s_waitcnt vmcnt(12)")
    A("s_barrier")
    stamp(A, 3)
    if getattr(A, "gprio", 0): A(f"s_setprio {A.gprio}")
    pre, L = read_list(0, 0, 0)
    for l in pre + L: A(l)
    for st in range(8):
        for j in range(2):
            if getattr(A, "ghi", 0) and 2*st + j == getattr(A, "glo", 0): A("s_setprio 1")
            if getattr(A, "ghi", 0) and 2*st + j == A.ghi: A("s_setprio 0")
            A("s_waitcnt lgkmcnt(0)")
            if j == 1 and st < 7:
                A(f"s_waitcnt vmcnt({4 if st <= 5 else 0})")
                A("s_barrier")
            if j == 0: pre, R = read_list(st, 1, 1)
            elif st < 7: pre, R = read_list(st+1, 0, 0)
            else: pre, R = [], []
            n = 2*st + 4 + j
            if n < 16 and n >= 5: setup, D = issue_parts(n)
            else: setup, D = [], []
            for l in pre + setup: A(l)
            M = mfma_list(j)
            for k in range(8):
                A(M[k])
                if k % 2 == 0 and D: A(D[k//2])
                for rr in R[2*k:2*k+2]: A(rr)
    stamp(A, 4)
    if getattr(A, "ghi", 0) >= 16: A("s_setprio 0")
    if getattr(A, "gprio", 0): A(f"s_setprio {getattr(A, 'eprio', 0)}")
    A("s_nop 7")
    A("s_nop 7")
    A("s_nop 7")
    A(f"s_mov_b32 s30, 0x{(LOG2E | 0x80000000):x}")
    A("s_mov_b32 s31, 0xffff0000")
    A("s_lshl_b32 s32, s10, 1")
    A("s_add_u32 s32, s32, s19")
    A("s_mul_i32 s32, s32, 56")
    A("s_lshl_b32 s33, s12, 2")
    A("s_add_u32 s32, s32, s33")
    A("s_lshl_b32 s33, s28, 1")
    A("s_add_u32 s32, s32, s33")
    A("s_lshl_b32 s32, s32, 12")
    srd_off(A, 36, 4, 5, "s32", 8192)
    A("s_mov_b32 s34, 4096")
    pk = getattr(A, "epk", 0)
    if pk:
        A("s_mov_b32 s60, s30")
        A("s_mov_b32 s61, s30")
        A("s_mov_b32 s62, 1.0")
        A("s_mov_b32 s63, 1.0")
    for p in range(2):
        for lt in range(4):
            o = 32 + (p*4+lt)*4
            lt2, sx = lt >> 1, lt & 1
            prs = []
            for pr in range(4):
                acc = ACC + (p*2+lt2)*16 + 8*sx
                prs.append((acc+2*pr, o+pr, 16+2*pr))
            for (x0, od, t) in prs: A(f"v_cvt_pk_bf16_f32 v{od}, v{x0}, v{x0+1}")
            for (x0, od, t) in prs:
                A(f"v_lshlrev_b32 v{x0}, 16, v{od}")
                A(f"v_and_b32 v{x0+1}, s31, v{od}")
            for (x0, od, t) in prs:
                if pk: A(f"v_pk_mul_f32 {v(t,2)}, {v(x0,2)}, s[60:61]")
                else:
                    A(f"v_mul_f32 v{t}, s30, v{x0}")
                    A(f"v_mul_f32 v{t+1}, s30, v{x0+1}")
            for (x0, od, t) in prs:
                A(f"v_exp_f32 v{t}, v{t}")
                A(f"v_exp_f32 v{t+1}, v{t+1}")
            for (x0, od, t) in prs:
                if pk: A(f"v_pk_add_f32 {v(t,2)}, {v(t,2)}, s[62:63]")
                else:
                    A(f"v_add_f32 v{t}, 1.0, v{t}")
                    A(f"v_add_f32 v{t+1}, 1.0, v{t+1}")
            for (x0, od, t) in prs:
                A(f"v_rcp_f32 v{t}, v{t}")
                A(f"v_rcp_f32 v{t+1}, v{t+1}")
            for (x0, od, t) in prs:
                if pk: A(f"v_pk_mul_f32 {v(t,2)}, {v(t,2)}, {v(x0,2)}")
                else:
                    A(f"v_mul_f32 v{t}, v{t}, v{x0}")
                    A(f"v_mul_f32 v{t+1}, v{t+1}, v{x0+1}")
            for (x0, od, t) in prs: A(f"v_cvt_pk_bf16_f32 v{od}, v{t}, v{t+1}")
            A(f"buffer_store_dwordx4 {v(o,4)}, v14, s[36:39], {'0' if p == 0 else 's34'} offen offset:{lt2*2048 + sx*512}" + getattr(A, "hst", ""))
    stamp(A, 5)
    if getattr(A, "fused", 0):
        A("s_mov_b32 s58, s10")
        A("s_mov_b32 s59, s12")
        A("s_waitcnt vmcnt(0)")
        A("s_barrier")
        A("s_setprio 0")
        A("s_branch L_role_b")
        return
    if getattr(A, "wbl2", False):
        A("s_waitcnt vmcnt(0)")
        A("s_barrier")
        A("s_cmp_lg_u32 s11, 0")
        A(f"s_cbranch_scc1 {endlabel}")
        A("buffer_wbl2 sc1")
        A("s_waitcnt vmcnt(0)")
    A(f"s_branch {endlabel}")
```

```python
from asmlib import *
from kb2 import flag_clear
LOG2E = 0x3fb8aa3b

def gen_side(A, endlabel):
    A.c("==== side role ====")
    A(f"s_load_dwordx2 s[4:5], s[0:1], {KA['ws']}")
    A(f"s_load_dwordx2 s[6:7], s[0:1], {KA['u']}")
    A(f"s_load_dwordx2 s[8:9], s[0:1], {KA['w2']}")
    A(f"s_load_dwordx2 s[34:35], s[0:1], {KA['gate_w']}")
    A("v_lshrrev_b32 v1, 6, v0")
    A("v_and_b32 v2, 63, v0")
    A("s_sub_u32 s10, s2, 224")
    A("v_readfirstlane_b32 s11, v1")
    A("v_lshlrev_b32 v3, 4, v2")
    A("s_waitcnt lgkmcnt(0)")
    if getattr(A, "fused", 0):
        A("s_lshr_b32 s58, s10, 1")
        A("s_and_b32 s59, s10, 1")
        A("s_add_u32 s59, s59, 14")
        flag_clear(A, 4, 5, "s58", "s59", 36, 6)
    A("s_lshl_b32 s12, s10, 6")
    A("s_lshl_b32 s13, s11, 4")
    A("s_add_u32 s12, s12, s13")
    A("s_lshl_b32 s13, s12, 10")
    srd_off(A, 20, 6, 7, "s13", 16*1024)
    srd(A, 24, 34, 35, 1024)
    A("buffer_load_dwordx4 v[8:11], v3, s[24:27], 0 offen")
    for n in range(16):
        A(f"s_mov_b32 s14, {n*1024}")
        A(f"buffer_load_dwordx4 {v(32+4*n,4)}, v3, s[20:23], s14 offen")
    if not getattr(A, 'fused', 0) and not getattr(A, 'now2', 0):
        now2 = A.label("now2")
        A("s_cmp_ge_u32 s10, 28")
        A(f"s_cbranch_scc1 {now2}")
        srd(A, 28, 8, 9, 1792*1024)
        srd_off(A, 36, 4, 5, WS_W2F, 1792*1024)
        A("v_lshrrev_b32 v4, 3, v2")
        A("v_lshlrev_b32 v4, 10, v4")
        A("v_and_b32 v5, 7, v2")
        A("v_lshlrev_b32 v5, 4, v5")
        A("v_add_u32 v4, v4, v5")
        A("s_lshl_b32 s15, s10, 4")
        A("s_lshl_b32 s16, s11, 2")
        A("s_add_u32 s15, s15, s16")
        A("s_lshl_b32 s17, s11, 14")
        for n in range(4):
            A(f"s_add_u32 s16, s15, {n}")
            A("s_and_b32 s18, s16, 7")
            A("s_lshr_b32 s19, s16, 3")
            A("s_lshl_b32 s40, s19, 15")
            A("s_lshl_b32 s41, s18, 7")
            A("s_add_u32 s40, s40, s41")
            A("s_mul_i32 s41, s18, 56")
            A("s_add_u32 s41, s41, s19")
            A(f"s_lshl_b32 s{44+n}, s41, 12")
            A(f"s_add_u32 m0, s17, {n*4096}")
            for q in range(4):
                A(f"s_add_u32 s41, s40, {q*(8192-1024)}")
                A(f"buffer_load_dwordx4 v4, s[28:31], s41 offen offset:{q*1024} lds")
        A("v_lshrrev_b32 v5, 5, v2")
        A("v_lshlrev_b32 v5, 4, v5")
        A("v_lshrrev_b32 v6, 4, v2")
        A("v_and_b32 v6, 1, v6")
        A("v_lshlrev_b32 v6, 2, v6")
        A("v_add_u32 v5, v5, v6")
        A("v_lshrrev_b32 v6, 2, v2")
        A("v_and_b32 v6, 3, v6")
        A("v_add_u32 v5, v5, v6")
        A("v_lshlrev_b32 v5, 7, v5")
        A("v_and_b32 v6, 3, v2")
        A("v_lshlrev_b32 v6, 4, v6")
        A("v_add_u32 v5, v5, v6")
        A("v_add_u32 v5, s17, v5")
        A("s_waitcnt vmcnt(0)")
        for n in range(4):
            for dt in range(4):
                o = n*4096 + 64*(dt >> 1) + 8*(dt & 1)
                A(f"ds_read_b64_tr_b16 {v(96+(n*4+dt)*4,2)}, v5 offset:{o}")
                A(f"ds_read_b64_tr_b16 {v(96+(n*4+dt)*4+2,2)}, v5 offset:{o+1024}")
            if n == 1: A("s_waitcnt lgkmcnt(0)")
        A("s_waitcnt lgkmcnt(0)")
        for n in range(4):
            for dt in range(4):
                A(f"buffer_store_dwordx4 {v(96+(n*4+dt)*4,4)}, v3, s[36:39], s{44+n} offen offset:{dt*1024}" + getattr(A, "hst", ""))
        A(f"{now2}:")
    A("s_waitcnt vmcnt(16)" if False else "s_waitcnt vmcnt(0)")
    A("s_mov_b32 s31, 0xffff0000")
    for k in range(4):
        A(f"v_lshlrev_b32 v{16+2*k}, 16, v{8+k}")
        A(f"v_and_b32 v{17+2*k}, s31, v{8+k}")
    for n in range(16):
        src = 32 + 4*n
        for k in range(4):
            A(f"v_lshlrev_b32 v24, 16, v{src+k}")
            A(f"v_and_b32 v25, s31, v{src+k}")
            A(f"v_mul_f32 v24, v24, v{16+2*k}")
            A(f"v_mul_f32 v25, v25, v{17+2*k}")
            A(f"v_cvt_pk_bf16_f32 v26, v24, v25")
            A(f"v_lshlrev_b32 v24, 16, v26")
            A(f"v_and_b32 v25, s31, v26")
            if k == 0:
                A(f"v_add_f32 v{160+n}, v24, v25")
            else:
                A(f"v_add_f32 v24, v24, v25")
                A(f"v_add_f32 v{160+n}, v{160+n}, v24")
    for sh in (1, 2, 4, 8):
        for n in range(16):
            A(f"v_add_f32_dpp v{160+n}, v{160+n}, v{160+n} row_shr:{sh} row_mask:0xf bank_mask:0xf bound_ctrl:0")
    for n in range(16):
        A(f"v_add_f32_dpp v{160+n}, v{160+n}, v{160+n} row_bcast:15 row_mask:0xa bank_mask:0xf")
    for n in range(16):
        A(f"v_add_f32_dpp v{160+n}, v{160+n}, v{160+n} row_bcast:31 row_mask:0xc bank_mask:0xf")
    A("v_mov_b32 v24, 0")
    A("s_nop 1")
    for n in range(16):
        A(f"v_readlane_b32 s{44+(n%4)}, v{160+n}, 63")
        A("s_nop 3")
        A(f"v_writelane_b32 v24, s{44+(n%4)}, {n}")
    A("v_cvt_pk_bf16_f32 v24, v24, v24")
    A("v_and_b32 v24, s31, v24")
    A(f"v_mul_f32 v24, 0x{(LOG2E | 0x80000000):x}, v24")
    A("v_exp_f32 v24, v24")
    A("s_nop 0")
    A("v_add_f32 v24, 1.0, v24")
    A("v_rcp_f32 v24, v24")
    A("s_nop 0")
    A("v_cvt_pk_bf16_f32 v24, v24, v24")
    A("v_and_b32 v24, s31, v24")
    A("s_lshl_b32 s13, s12, 2")
    A(f"s_add_u32 s13, s13, {WS_G}")
    srd_off(A, 20, 4, 5, "s13", 64)
    A("v_lshlrev_b32 v25, 2, v2")
    A("buffer_store_dword v24, v25, s[20:23], 0 offen" + getattr(A, "hst", ""))
    if getattr(A, "fused", 0):
        A("s_waitcnt vmcnt(0)")
        A("s_barrier")
        A("s_branch L_role_b")
        return
    A(f"s_branch {endlabel}")
```

```python
from asmlib import *
from kb2 import signal as sig2, cnt_off, CB_UT, CB_AT
LOG2E = 0x3fb8aa3b
INV2PI = 0x3e22f983
UB = 512; CS = 4160; UCH = 4*CS
KB = 34048; KCH = 4608
FB = 43264; FCH = 4224
PT = 51712
RED = 59904
F2K = 76288

def cexp(A, dre, dim, alpha, beta, t, tmp):
    A(f"v_mul_f32 v{tmp}, {t}, v{alpha}")
    A(f"v_mul_f32 v{tmp+1}, {t}, v{beta}")
    A(f"v_exp_f32 v{tmp}, v{tmp}")
    A(f"v_fract_f32 v{tmp+1}, v{tmp+1}")
    A(f"v_cos_f32 v{dre}, v{tmp+1}")
    A(f"v_sin_f32 v{dim}, v{tmp+1}")
    A("s_nop 0")
    A(f"v_mul_f32 v{dre}, v{dre}, v{tmp}")
    A(f"v_mul_f32 v{dim}, v{dim}, v{tmp}")

def cmul(A, dre, dim, are, aim, bre, bim, tmp):
    A(f"v_mul_f32 v{tmp}, v{aim}, v{bim}")
    A(f"v_mul_f32 v{tmp+1}, v{aim}, v{bre}")
    A(f"v_fma_f32 v{dre}, v{are}, v{bre}, -v{tmp}")
    A(f"v_fma_f32 v{dim}, v{are}, v{bim}, v{tmp+1}")

def gen_ssm(A, endlabel, part="all"):
    kg = part in ("all", "kgen"); cv = part in ("all", "conv"); al = part == "all"
    W = 200
    GA = 216
    idbase = 0 if part == 'conv' else 256
    A.c("==== SSM role ====")
    for i, n in enumerate(["ws", "u", "A_re", "A_im", "B_re", "B_im", "C_re", "C_im", "log_dt", "Dskip"]):
        A(f"s_load_dwordx2 s[{4+2*i}:{5+2*i}], s[0:1], {KA[n]}")
    A(f"s_load_dwordx2 s[58:59], s[0:1], {KA['dbg']}")
    A(f"s_load_dwordx2 s[56:57], s[0:1], {KA['w2']}")
    A("v_lshrrev_b32 v1, 6, v0")
    A("v_and_b32 v2, 63, v0")
    A(f"s_sub_u32 s24, s2, {idbase}")
    A("v_readfirstlane_b32 s25, v1")
    A("s_and_b32 s26, s24, 7")
    A("s_lshr_b32 s27, s24, 3")
    A("s_lshl_b32 s26, s26, 6")
    A("s_lshl_b32 s27, s27, 1")
    A("s_add_u32 s26, s26, s27")
    A("s_lshr_b32 s27, s25, 1")
    A("s_and_b32 s28, s25, 1")
    A("s_add_u32 s29, s26, s27")
    A("s_lshl_b32 s30, s29, 8")
    A("s_lshl_b32 s31, s28, 7")
    A("s_add_u32 s30, s30, s31")
    A("v_lshlrev_b32 v3, 1, v2")
    A("v_add_u32 v3, s30, v3")
    A("s_lshl_b32 s31, s26, 1")
    A("s_waitcnt lgkmcnt(0)")
    A("s_add_u32 s20, s20, s31\ns_addc_u32 s21, s21, 0")
    A("s_add_u32 s22, s22, s31\ns_addc_u32 s23, s23, 0")
    A("s_load_dword s32, s[20:21], 0")
    A("s_load_dword s33, s[22:23], 0")
    if kg:
        A("s_and_b32 s34, s24, 7")
        A("s_lshr_b32 s35, s24, 3")
        if getattr(A, "map47", 0):
            A("s_and_b32 s48, s34, 1")
            A("s_lshr_b32 s34, s34, 1")
            A("s_lshl_b32 s34, s34, 3")
            A("s_and_b32 s47, s35, 7")
            A("s_add_u32 s34, s34, s47")
            A("s_lshr_b32 s35, s35, 3")
            A("s_lshl_b32 s48, s48, 2")
            A("s_add_u32 s35, s35, s48")
        else:
            A("s_lshl_b32 s34, s34, 2")
            A("s_and_b32 s47, s35, 3")
            A("s_add_u32 s34, s34, s47")
            A("s_lshr_b32 s35, s35, 2")
        A("s_lshl_b32 s47, s34, 16")
        A("s_lshl_b32 s48, s25, 14")
        A("s_add_u32 s47, s47, s48")
        A("s_lshl_b32 s48, s35, 7")
        A("s_add_u32 s47, s47, s48")
        srd_off(A, 40, 6, 7, "s47", 15*1024 + 128)
        A("v_lshrrev_b32 v4, 3, v2")
        A("v_lshlrev_b32 v4, 10, v4")
        A("v_and_b32 v5, 7, v2")
        A("v_lshlrev_b32 v5, 4, v5")
        A("v_add_u32 v4, v4, v5")
        A("s_lshl_b32 s48, s25, 11")
        A(f"s_add_u32 s48, s48, {RED}")
        A("s_mov_b32 m0, s48")
        A(f"s_mov_b32 s49, {8192-1024}")
        A("buffer_load_dwordx4 v4, s[40:43], 0 offen lds")
        A("buffer_load_dwordx4 v4, s[40:43], s49 offen offset:1024 lds")
        for i in range(6):
            srd(A, 36, 8+2*i, 9+2*i, 512*128*2)
            A(f"buffer_load_ushort v{8+i}, v3, s[36:39], 0 offen")
        A("v_and_b32 v6, 127, v0")
        A("v_lshlrev_b32 v6, 4, v6")
        A("v_lshrrev_b32 v7, 7, v0")
        A(f"v_mul_u32_u24 v7, {FCH}, v7")
        A(f"v_add_u32 v7, {FB}, v7")
        A("s_mov_b32 s46, 0xffff0000")
        for e in range(16):
            r = GA + e
            A(f"v_add_u32 v{r}, {e}, v6")
            A(f"v_cvt_f32_u32 v{r}, v{r}")
            A(f"v_cvt_pk_bf16_f32 v{r}, v{r}, v{r}")
            A(f"v_and_b32 v{r}, s46, v{r}")
            A(f"v_cvt_u32_f32 v{r}, v{r}")
            A(f"v_lshl_add_u32 v{r}, v{r}, 1, v7")
    if part == "conv":
        srd(A, 60, 58, 59, 256)
        A("s_lshl_b32 s47, s29, 12")
        A("s_lshl_b32 s48, s28, 11")
        A("s_add_u32 s47, s47, s48")
        A(f"s_add_u32 s47, s47, {WS_KX}")
        srd_off(A, 36, 4, 5, "s47", 2048)
        A(f"s_mul_i32 s49, s27, {KCH}")
        A("s_add_u32 s49, s49, s48")
        A(f"s_add_u32 m0, s49, {KB+512}")
        A("v_lshlrev_b32 v4, 4, v2")
        A("s_lshl_b32 s47, s29, 12")
        A(f"s_add_u32 s47, s47, {WS_UT}")
        srd_off(A, 40, 4, 5, "s47", 4096)
        A("buffer_load_dwordx4 v4, s[36:39], 0 offen lds")
        A("buffer_load_dwordx4 v4, s[36:39], 0 offen offset:1024 lds")
        A("v_and_b32 v192, 127, v0")
        A("v_lshlrev_b32 v192, 5, v192")
        A("v_subrev_u32 v193, 8, v192")
        A("v_max_i32 v193, 0, v193")
        A(f"buffer_load_dwordx4 {v(W,4)}, v192, s[40:43], 0 offen")
        A(f"buffer_load_dwordx4 {v(W+4,4)}, v192, s[40:43], 0 offen offset:16")
        A(f"buffer_load_dwordx2 {v(W+8,2)}, v193, s[40:43], 0 offen")
        A("s_mov_b32 s46, 0xffff0000")
    if cv:
        A("v_mov_b32 v232, 0\nv_mov_b32 v233, 0\nv_mov_b32 v234, 0\nv_mov_b32 v235, 0")
        A("v_lshrrev_b32 v14, 5, v0")
        A(f"v_mul_u32_u24 v14, {KCH}, v14")
        A("v_and_b32 v15, 31, v0")
        A("v_lshlrev_b32 v15, 4, v15")
        A("v_add_u32 v14, v14, v15")
        A(f"v_add_u32 v14, {KB}, v14")
        A("v_subrev_u32 v15, 64, v0")
        A("v_lshrrev_b32 v16, 3, v15")
        A(f"v_mul_u32_u24 v16, {UCH}, v16")
        A("v_lshrrev_b32 v17, 1, v15")
        A("v_and_b32 v17, 3, v17")
        A(f"v_mul_u32_u24 v17, {CS}, v17")
        A("v_add_u32 v16, v16, v17")
        A("v_and_b32 v17, 1, v15")
        A("v_lshlrev_b32 v17, 4, v17")
        A("v_add_u32 v16, v16, v17")
        A(f"v_add_u32 v16, {UB+4096}, v16")
        A("v_cmp_gt_u32 vcc, 64, v0")
        A("s_nop 1")
        A("v_cndmask_b32 v14, v16, v14, vcc")
        A("v_cmp_gt_u32 vcc, 80, v0")
        A("s_and_saveexec_b64 s[44:45], vcc")
        pz = A.label("pz")
        A(f"s_cbranch_execz {pz}")
        A("ds_write_b128 v14, v[232:235]")
        A(f"{pz}:")
        A("s_mov_b64 exec, s[44:45]")
    if kg:
        A("v_lshrrev_b32 v14, 4, v2")
        A("v_lshlrev_b32 v15, 10, v14")
        A("v_lshrrev_b32 v16, 2, v2")
        A("v_and_b32 v16, 3, v16")
        A("v_lshlrev_b32 v16, 7, v16")
        A("v_add_u32 v15, v15, v16")
        A("v_and_b32 v16, 3, v2")
        A("v_lshlrev_b32 v16, 3, v16")
        A("v_add_u32 v15, v15, v16")
        A("s_lshl_b32 s48, s25, 5")
        A(f"s_add_u32 s48, s48, {RED}")
        A("v_add_u32 v15, s48, v15")
        A("v_and_b32 v16, 15, v2")
        A("v_lshlrev_b32 v16, 12, v16")
        A("v_lshlrev_b32 v14, 4, v14")
        A("v_add_u32 v16, v16, v14")
        A("s_lshl_b32 s47, s35, 18")
        A("s_lshl_b32 s48, s25, 16")
        A("s_add_u32 s47, s47, s48")
        A("s_lshl_b32 s48, s34, 7")
        A("s_add_u32 s47, s47, s48")
        A(f"s_add_u32 s47, s47, {WS_UT}")
        srd_off(A, 40, 4, 5, "s47", 16*4096)
        srd(A, 60, 58, 59, 256)
        A("s_waitcnt vmcnt(6)")
        A("s_barrier")
        for hf in range(2):
            for k in range(2):
                A(f"ds_read_b64_tr_b16 {v(184+hf*4+k*2,2)}, v15 offset:{hf*4096 + k*512}")
        A("s_waitcnt lgkmcnt(0)")
        for hf in range(2):
            A(f"buffer_store_dwordx4 {v(184+hf*4,4)}, v16, s[40:43], 0 offen offset:{hf*64}" + (" sc1" if al else getattr(A, "hst", "")))
        A("s_waitcnt lgkmcnt(0)")
        A("s_lshl_b32 s47, s27, 4")
        A("s_lshr_b32 s32, s32, s47")
        A("s_lshl_b32 s32, s32, 16")
        A("s_lshr_b32 s33, s33, s47")
        A("s_lshl_b32 s33, s33, 16")
        A("v_mov_b32 v14, s32")
        A(f"v_mul_f32 v14, 0x{LOG2E:x}, v14")
        A("v_exp_f32 v14, v14")
        A("s_nop 0")
        A("v_cvt_pk_bf16_f32 v14, v14, v14")
        A("v_and_b32 v14, s46, v14")
        A("s_waitcnt vmcnt(2)")
        stamp(A, 3)
        for i in range(6): A(f"v_lshlrev_b32 v{8+i}, 16, v{8+i}")
        A("v_mul_f32 v20, v14, v8")
        A("v_mul_f32 v21, v14, v9")
        A(f"v_mul_f32 v20, 0x{LOG2E:x}, v20")
        A(f"v_mul_f32 v21, 0x{INV2PI:x}, v21")
        A("v_mul_f32 v10, v14, v10")
        A("v_mul_f32 v11, v14, v11")
        cmul(A, 22, 23, 12, 13, 10, 11, 16)
        A("s_mov_b32 s48, 0x44000000")
        A("s_mov_b32 s49, 0x45000000")
        cexp(A, 24, 25, 20, 21, "s48", 16)
        cexp(A, 26, 27, 20, 21, "4.0", 16)
        cexp(A, 28, 29, 20, 21, "s49", 16)
        A("v_mul_f32 v28, v28, v22")
        A("v_fma_f32 v28, -v29, v23, v28")
        A("s_lshl_b32 s50, s27, 12")
        A("s_lshl_b32 s51, s28, 11")
        A("s_add_u32 s50, s50, s51")
        A(f"s_add_u32 s50, s50, {PT}")
        A("v_lshlrev_b32 v15, 5, v2")
        A("v_add_u32 v15, s50, v15")
        A("ds_write_b128 v15, v[20:23]")
        A("ds_write_b128 v15, v[24:27] offset:16")
        for sh in (1, 2, 4, 8):
            A("s_nop 1")
            A(f"v_add_f32_dpp v28, v28, v28 row_shr:{sh} row_mask:0xf bank_mask:0xf bound_ctrl:0")
        A("s_nop 1")
        A("v_add_f32_dpp v28, v28, v28 row_bcast:15 row_mask:0xa bank_mask:0xf")
        A("s_nop 1")
        A("v_add_f32_dpp v28, v28, v28 row_bcast:31 row_mask:0xc bank_mask:0xf")
        A("s_lshl_b32 s51, s25, 2")
        A(f"s_add_u32 s51, s51, {F2K}")
        A("v_mov_b32 v29, s51")
        A("s_mov_b64 s[44:45], exec")
        A("s_mov_b32 exec_lo, 0")
        A("s_mov_b32 exec_hi, 0x80000000")
        A("ds_write_b32 v29, v28")
        A("s_mov_b64 exec, s[44:45]")
        A("v_and_b32 v16, 15, v2")
        A("v_lshrrev_b32 v17, 4, v2")
        A("v_lshrrev_b32 v18, 2, v16")
        A("v_lshlrev_b32 v18, 3, v18")
        A("v_and_b32 v19, 3, v16")
        A("v_add_u32 v18, v18, v19")
        A("v_cvt_f32_u32 v18, v18")
        A("v_lshlrev_b32 v19, 5, v16")
        A("v_cvt_f32_u32 v19, v19")
        A("v_lshlrev_b32 v15, 7, v17")
        A("v_add_u32 v15, s50, v15")
        FA = 96
        for i in range(32): A(f"v_mov_b32 v{FA+i}, 0")
        PR = 32
        YA = 64
        XB = 72
        A("s_waitcnt lgkmcnt(0)")
        pk = getattr(A, "pk", 0)
        TY, TP, TE, TF, TT = 128, 136, 144, 160, 176
        def cmul4(dst, a, b):
            if pk:
                for m in range(4):
                    A(f"v_pk_mul_f32 {v(TT+2*m,2)}, {v(a(m),2)}, {v(b(m),2)} op_sel:[1,1] op_sel_hi:[1,0]")
                for m in range(4):
                    A(f"v_pk_fma_f32 {v(dst(m),2)}, {v(a(m),2)}, {v(b(m),2)}, {v(TT+2*m,2)} op_sel:[0,0,0] op_sel_hi:[0,1,1] neg_lo:[0,0,1]")
            else:
                for m in range(4):
                    A(f"v_mul_f32 v{TT+2*m}, v{a(m)+1}, v{b(m)+1}")
                    A(f"v_mul_f32 v{TT+2*m+1}, v{a(m)+1}, v{b(m)}")
                for m in range(4):
                    A(f"v_fma_f32 v{dst(m)}, v{a(m)}, v{b(m)}, -v{TT+2*m}")
                    A(f"v_fma_f32 v{dst(m)+1}, v{a(m)}, v{b(m)+1}, v{TT+2*m+1}")
        kloop = getattr(A, "kloop", 1)
        def rd_lo():
            for m in range(4): A(f"ds_read_b128 {v(PR+8*m,4)}, v15 offset:{m*32}")
        def rd_hi():
            for m in range(4): A(f"ds_read_b128 {v(PR+8*m+4,4)}, v15 offset:{m*32 + 16}")
        rd_lo(); rd_hi()
        A("s_and_b32 s48, s24, 7")
        for l in cnt_off("s47", "s48", CB_UT, "s49"): A(l)
        A("v_mov_b32 v192, s47")
        A("s_mov_b32 s47, 0")
        kl = A.label("kgen")
        if kloop: A(f"{kl}:")
        for ks in range(1 if kloop else 4):
            def signal():
                stamp(A, 11)
                A("s_waitcnt vmcnt(0)")
                stamp(A, 10)
                A("s_barrier")
                sk = A.label("sig")
                A("s_cmp_lg_u32 s25, 0")
                A(f"s_cbranch_scc1 {sk}")
                for l in cnt_off("s48", "s35", CB_UT, "s49"): A(l)
                A("v_mov_b32 v194, s48")
                A("v_mov_b32 v195, 1")
                A("s_mov_b64 s[44:45], exec")
                A("s_mov_b64 exec, 1")
                A("buffer_atomic_add v195, v194, s[60:63], 0 offen sc1")
                A("s_mov_b64 exec, s[44:45]")
                A(f"{sk}:")
            if not al: pass
            elif kloop:
                skp = A.label("nosig")
                A("s_cmp_lg_u32 s47, 1")
                A(f"s_cbranch_scc1 {skp}")
                signal()
                A(f"{skp}:")
            elif ks == 1: signal()
            if not al: pass
            elif kloop:
                skp = A.label("nopoll")
                A("s_cmp_lg_u32 s47, 3")
                A(f"s_cbranch_scc1 {skp}")
                A("buffer_load_dword v193, v192, s[60:63], 0 offen sc1")
                A(f"{skp}:")
            elif ks == 3:
                A("buffer_load_dword v193, v192, s[60:63], 0 offen sc1")
            A("v_add_u32 v15, 512, v15")
            A("s_waitcnt lgkmcnt(4)")
            P = lambda m: PR + 8*m
            for m in range(4):
                if pk:
                    A(f"v_pk_mul_f32 {v(TE+2*m,2)}, v[18:19], {v(P(m),2)} op_sel:[0,0] op_sel_hi:[0,1]")
                    A(f"v_pk_mul_f32 {v(TF+2*m,2)}, v[18:19], {v(P(m),2)} op_sel:[1,0] op_sel_hi:[1,1]")
                else:
                    A(f"v_mul_f32 v{TE+2*m}, v18, v{P(m)}")
                    A(f"v_mul_f32 v{TE+2*m+1}, v18, v{P(m)+1}")
                    A(f"v_mul_f32 v{TF+2*m}, v19, v{P(m)}")
                    A(f"v_mul_f32 v{TF+2*m+1}, v19, v{P(m)+1}")
            for T in (TE, TF):
                for m in range(4): A(f"v_fract_f32 v{T+2*m+1}, v{T+2*m+1}")
            for T, D in ((TF, TP), (TE, TY)):
                for m in range(4):
                    A(f"v_exp_f32 v{T+2*m}, v{T+2*m}")
                    A(f"v_cos_f32 v{D+2*m}, v{T+2*m+1}")
                    A(f"v_sin_f32 v{D+2*m+1}, v{T+2*m+1}")
            for T, D in ((TF, TP), (TE, TY)):
                for m in range(4):
                    if pk:
                        A(f"v_pk_mul_f32 {v(D+2*m,2)}, {v(D+2*m,2)}, {v(T+2*m,2)} op_sel:[0,0] op_sel_hi:[1,0]")
                    else:
                        A(f"v_mul_f32 v{D+2*m}, v{D+2*m}, v{T+2*m}")
                        A(f"v_mul_f32 v{D+2*m+1}, v{D+2*m+1}, v{T+2*m}")
            cmul4(lambda m: TF+2*m, lambda m: TP+2*m, lambda m: P(m)+2)
            rd_lo()
            A("s_waitcnt lgkmcnt(4)")
            for m in range(4): A(f"v_cvt_pk_bf16_f32 v{YA+m}, v{TY+2*m}, v{TY+2*m+1}")
            cmul4(lambda m: TE+2*m, lambda m: TY+2*m, lambda m: P(m)+6)
            cur, oth = TF, TP
            for m in range(4): A(f"v_cvt_pk_bf16_f32 v{YA+4+m}, v{TE+2*m}, v{TE+2*m+1}")
            for r in range(4):
                for m in range(4): A(f"v_cvt_pk_bf16_f32 v{XB+4*r+m}, v{cur+2*m}, -v{cur+2*m+1}")
                if r < 3:
                    cmul4(lambda m: oth+2*m, lambda m: cur+2*m, lambda m: P(m)+4)
                    cur, oth = oth, cur
                if r == 2: rd_hi()
            A("s_nop 1")
            for c in range(2):
                for r in range(4):
                    acc = FA + (c*4+r)*4
                    A(f"v_mfma_f32_16x16x32_bf16 {v(acc,4)}, {v(YA+4*c,4)}, {v(XB+4*r,4)}, {v(acc,4)}")
        if kloop:
            A("s_add_u32 s47, s47, 1")
            A("s_cmp_lt_u32 s47, 4")
            A(f"s_cbranch_scc1 {kl}")
    stamp(A, 4)
    if al:
        stamp(A, 12)
        pl = A.label("poll"); pd = A.label("polled")
        A("s_mov_b32 s53, 0")
        A(f"{pl}:")
        A("s_waitcnt vmcnt(0)")
        A("v_readfirstlane_b32 s47, v193")
        A("s_cmp_ge_u32 s47, 32")
        A(f"s_cbranch_scc1 {pd}")
        A("s_add_u32 s53, s53, 1")
        A("s_cmp_ge_u32 s53, 0x40000")
        A(f"s_cbranch_scc1 {pd}")
        A("s_sleep 8")
        A("buffer_load_dword v193, v192, s[60:63], 0 offen sc1")
        A(f"s_branch {pl}")
        A(f"{pd}:")
        stamp(A, 2)
        A("s_lshl_b32 s47, s29, 12")
        A(f"s_add_u32 s47, s47, {WS_UT}")
        srd_off(A, 40, 4, 5, "s47", 4096)
        A("v_and_b32 v192, 127, v0")
        A("v_lshlrev_b32 v192, 5, v192")
        A("v_subrev_u32 v193, 8, v192")
        A("v_max_i32 v193, 0, v193")
        A(f"buffer_load_dwordx4 {v(W,4)}, v192, s[40:43], 0 offen sc1")
        A(f"buffer_load_dwordx4 {v(W+4,4)}, v192, s[40:43], 0 offen offset:16 sc1")
        A(f"buffer_load_dwordx2 {v(W+8,2)}, v193, s[40:43], 0 offen sc1")
    if kg:
        A("s_nop 7")
        A("v_lshlrev_b32 v14, 4, v2")
        A("s_lshl_b32 s54, s25, 12")
        A(f"s_add_u32 s54, s54, {RED}")
        A("v_add_u32 v15, s54, v14")
        A("s_xor_b32 s55, s25, 1")
        A("s_lshl_b32 s55, s55, 12")
        A(f"s_add_u32 s55, s55, {RED}")
        A("v_add_u32 v16, s55, v14")
        h1 = A.label("h1"); hd = A.label("hd")
        A("s_cmp_eq_u32 s28, 1")
        A(f"s_cbranch_scc1 {h1}")
        for c in range(2):
            for rr in range(2):
                A(f"ds_write_b128 v15, {v(FA+(c*4+2+rr)*4,4)} offset:{(c*2+rr)*1024}")
                for k in range(4): A(f"v_mov_b32 v{64+(c*2+rr)*4+k}, v{FA+(c*4+rr)*4+k}")
        A(f"s_branch {hd}")
        A(f"{h1}:")
        for c in range(2):
            for rr in range(2):
                A(f"ds_write_b128 v15, {v(FA+(c*4+rr)*4,4)} offset:{(c*2+rr)*1024}")
                for k in range(4): A(f"v_mov_b32 v{64+(c*2+rr)*4+k}, v{FA+(c*4+2+rr)*4+k}")
        A(f"{hd}:")
        A("s_waitcnt lgkmcnt(0)")
        A("s_barrier")
        for t in range(4): A(f"ds_read_b128 {v(80+4*t,4)}, v16 offset:{t*1024}")
        A("s_lshl_b32 s51, s27, 3")
        A(f"s_add_u32 s51, s51, {F2K}")
        A("v_mov_b32 v29, s51")
        A("ds_read_b64 v[30:31], v29")
        A("s_waitcnt lgkmcnt(0)")
        for i in range(16): A(f"v_add_f32 v{64+i}, v{64+i}, v{80+i}")
        A("v_and_b32 v16, 15, v2")
        A("v_lshlrev_b32 v16, 6, v16")
        A("v_lshrrev_b32 v17, 4, v2")
        A("v_lshlrev_b32 v17, 4, v17")
        A("v_add_u32 v16, v16, v17")
        A(f"s_mul_i32 s56, s27, {FCH}")
        A("s_lshl_b32 s57, s28, 11")
        A("s_add_u32 s57, s57, s56")
        A(f"s_add_u32 s57, s57, {FB}")
        A("v_add_u32 v16, s57, v16")
        for rr in range(2):
            for c in range(2):
                t = 64 + (c*2+rr)*4
                A(f"v_cvt_pk_bf16_f32 v{32+rr*4+c*2}, v{t}, v{t+1}")
                A(f"v_cvt_pk_bf16_f32 v{32+rr*4+c*2+1}, v{t+2}, v{t+3}")
            A(f"ds_write_b128 v16, {v(32+rr*4,4)} offset:{rr*1024}")
        A("v_add_f32 v30, v30, v31")
        A("v_cvt_pk_bf16_f32 v30, v30, v30")
        A(f"s_add_u32 s56, s56, {FB+4096}")
        A("v_mov_b32 v29, s56")
        A("s_mov_b64 s[44:45], exec")
        A("s_mov_b64 exec, 1")
        A("ds_write_b16 v29, v30")
        A("s_mov_b64 exec, s[44:45]")
        A("s_waitcnt lgkmcnt(0)")
        A("s_barrier")
        for e in range(16):
            op = "ds_read_u16" if e % 2 == 0 else "ds_read_u16_d16_hi"
            A(f"{op} v{(32 if e % 2 == 0 else 40)+e//2}, v{GA+e}")
            if e == 11: A("s_waitcnt lgkmcnt(4)")
        A("v_and_b32 v16, 127, v0")
        A("v_lshlrev_b32 v16, 5, v16")
        A("v_lshrrev_b32 v17, 7, v0")
        A(f"v_mul_u32_u24 v17, {KCH}, v17")
        A("v_add_u32 v16, v16, v17")
        A("s_waitcnt lgkmcnt(0)")
        for k in range(8): A(f"v_or_b32 v{32+k}, v{32+k}, v{40+k}")
    if al:
        A(f"ds_write_b128 v16, v[32:35] offset:{KB+512}")
        A(f"ds_write_b128 v16, v[36:39] offset:{KB+512+16}")
    if part == "kgen":
        A("s_lshl_b32 s47, s26, 12")
        A(f"s_add_u32 s47, s47, {WS_KX}")
        srd_off(A, 36, 4, 5, "s47", 8192)
        A("v_lshlrev_b32 v16, 5, v0")
        A("buffer_store_dwordx4 v[32:35], v16, s[36:39], 0 offen" + getattr(A, "hst", ""))
        A("buffer_store_dwordx4 v[36:39], v16, s[36:39], 0 offen offset:16" + getattr(A, "hst", ""))
    if part == "conv":
        A("s_waitcnt lgkmcnt(0)")
        A("s_lshl_b32 s47, s27, 4")
        A("s_lshr_b32 s33, s33, s47")
        A("s_lshl_b32 s33, s33, 16")
        A("s_lshl_b32 s54, s25, 12")
        A(f"s_add_u32 s54, s54, {RED}")
        A("s_xor_b32 s55, s25, 1")
        A("s_lshl_b32 s55, s55, 12")
        A(f"s_add_u32 s55, s55, {RED}")
    if cv:
        A("s_waitcnt vmcnt(0)")
        A("v_and_b32 v14, 127, v0")
        A("v_cmp_eq_u32 vcc, 0, v14")
        A("s_mov_b32 s52, 0xffff")
        A(f"v_cndmask_b32 v{W+8}, v{W+8}, 0, vcc" if False else f"v_mov_b32 v20, 0")
        A(f"v_cndmask_b32 v{W+8}, v{W+8}, v20, vcc")
        A(f"v_cndmask_b32 v{W+9}, v{W+9}, v20, vcc")
        A("v_sub_u32 v14, 127, v14")
        A("v_lshlrev_b32 v14, 5, v14")
        A(f"s_mul_i32 s53, s27, {UCH}")
        A("v_add_u32 v14, s53, v14")
        def PRG(p): return W + p if p >= 0 else W + 10 + p
        Q = 128
        for c in range(4):
            for b in range(2):
                q = Q + (c*2+b)*4
                for k in range(4):
                    j = 8*b + 7 - c - 2*k
                    if j % 2:
                        p = (j-1)//2
                        A(f"v_alignbit_b32 v{q+k}, v{PRG(p)}, v{PRG(p)}, 16")
                    else:
                        p = j//2
                        A(f"v_bfi_b32 v{q+k}, s52, v{PRG(p)}, v{PRG(p-1)}")
                A(f"ds_write_b128 v14, {v(q,4)} offset:{UB + c*CS + (1-b)*16}")
        A("s_waitcnt lgkmcnt(0)")
        A("s_barrier")
        stamp(A, 5)
        if getattr(A, "dump", False):
            dl = A.label("nodump")
            A("s_cmp_lg_u32 s24, 0")
            A(f"s_cbranch_scc1 {dl}")
            srd_off(A, 36, 4, 5, 0x2000000, 81920)
            A("v_lshlrev_b32 v14, 4, v0")
            for k in range(20):
                A(f"ds_read_b128 v[32:35], v14 offset:{k*4096}" if k < 16 else f"ds_read_b128 v[32:35], v13 offset:{(k-16)*4096}")
                if k == 15: A("v_add_u32 v13, 65536, v14")
                A("s_waitcnt lgkmcnt(0)")
                A(f"s_mov_b32 s58, {k*4096}")
                A("buffer_store_dwordx4 v[32:35], v14, s[36:39], s58 offen")
                A("s_waitcnt vmcnt(0)")
            A(f"{dl}:")
    if kg:
        if (getattr(A, "fused", 0) or getattr(A, "kb2", 0)) and getattr(A, "w2pf", 1):
            A(f"s_load_dwordx2 s[50:51], s[0:1], {KA['w2']}")
            A("s_lshr_b32 s48, s24, 3")
            A("s_mul_i32 s48, s48, 448")
            A("s_mul_i32 s49, s25, 112")
            A("s_add_u32 s48, s48, s49")
            A("s_lshl_b32 s48, s48, 7")
            A("v_min_u32 v196, 55, v2")
            A("v_lshlrev_b32 v196, 7, v196")
            A("s_waitcnt lgkmcnt(0)")
            srd(A, 36, 50, 51, 1792*1024)
            A("buffer_load_dword v197, v196, s[36:39], s48 offen")
            A("s_add_u32 s48, s48, 7168")
            A("buffer_load_dword v198, v196, s[36:39], s48 offen")
    if part == 'kgen':
        stamp(A, 7)
        A(f"s_branch {endlabel}")
        return
    A("v_and_b32 v16, 15, v2")
    A("v_lshrrev_b32 v17, 4, v2")
    A("v_lshlrev_b32 v18, 5, v16")
    A("v_lshlrev_b32 v19, 4, v17")
    A("v_add_u32 v18, v18, v19")
    A(f"s_mul_i32 s56, s27, {KCH}")
    A("s_lshl_b32 s57, s28, 8")
    A("s_sub_u32 s56, s56, s57")
    A(f"s_add_u32 s56, s56, {KB+480-192}")
    A("v_add_u32 v18, s56, v18")
    A("v_and_b32 v20, 3, v16")
    A("v_sub_u32 v20, 3, v20")
    A(f"v_mul_u32_u24 v20, {CS}, v20")
    A("v_add_u32 v20, v20, v19")
    A("v_lshrrev_b32 v21, 2, v16")
    A("v_lshlrev_b32 v21, 3, v21")
    A("v_sub_u32 v20, v20, v21")
    A(f"s_mul_i32 s56, s27, {UCH}")
    A("s_sub_u32 s56, s56, s57")
    A(f"s_add_u32 s56, s56, {UB+24}")
    A("v_add_u32 v19, s56, v20")
    CA = 32
    for i in range(32): A(f"v_mov_b32 v{CA+i}, 0")
    FS = 64
    def creads(rp, fs):
        b = FS + fs*64
        for sg in range(8):
            o = 4032 - 512*sg - 64*rp
            A(f"ds_read_b64 {v(b+4*sg,2)}, v19 offset:{o}")
            A(f"ds_read_b64 {v(b+4*sg+2,2)}, v19 offset:{o+8}")
            A(f"ds_read_b128 {v(b+32+4*sg,4)}, v18 offset:{192 + 512*sg - 64*rp}")
    def cmf(fs):
        b = FS + fs*64
        pairs = sorted([(sg, q) for q in range(8) for sg in range(q+1)], key=lambda p: (max(p[0], p[1]-p[0]), p[1]))
        return pairs, b
    creads(0, 0)
    for rp in range(4):
        fs = rp % 2
        if rp + 1 < 4:
            creads(rp+1, 1-fs)
            A("s_waitcnt lgkmcnt(15)")
        pairs, b = cmf(fs)
        if rp + 1 < 4:
            pass
        else:
            A("s_waitcnt lgkmcnt(0)")
        for (sg, q) in pairs:
            A(f"v_mfma_f32_16x16x32_bf16 {v(CA+4*q,4)}, {v(b+4*sg,4)}, {v(b+32+4*(q-sg),4)}, {v(CA+4*q,4)}")
    stamp(A, 6)
    A("s_nop 7")
    A("v_lshlrev_b32 v14, 4, v2")
    A("v_add_u32 v15, s54, v14")
    A("v_add_u32 v16, s55, v14")
    h1 = A.label("h1"); hd = A.label("hd")
    A("s_cmp_eq_u32 s28, 1")
    A(f"s_cbranch_scc1 {h1}")
    for t in range(4):
        A(f"ds_write_b128 v15, {v(CA+16+4*t,4)} offset:{t*1024}")
        for k in range(4): A(f"v_mov_b32 v{64+4*t+k}, v{CA+4*t+k}")
    A(f"s_branch {hd}")
    A(f"{h1}:")
    for t in range(4):
        A(f"ds_write_b128 v15, {v(CA+4*t,4)} offset:{t*1024}")
        for k in range(4): A(f"v_mov_b32 v{64+4*t+k}, v{CA+16+4*t+k}")
    A(f"{hd}:")
    A("s_waitcnt lgkmcnt(0)")
    A("s_barrier")
    for t in range(4): A(f"ds_read_b128 {v(80+4*t,4)}, v16 offset:{t*1024}")
    A("v_and_b32 v16, 15, v2")
    A("v_lshrrev_b32 v17, 4, v2")
    A("v_lshlrev_b32 v20, 5, v16")
    A("v_lshlrev_b32 v21, 3, v17")
    A("v_add_u32 v20, v20, v21")
    A(f"s_mul_i32 s56, s27, {UCH}")
    A("s_lshl_b32 s57, s28, 11")
    A("s_sub_u32 s56, s56, s57")
    A(f"s_add_u32 s56, s56, {UB + 4088 - 1536}")
    A("v_sub_u32 v21, s56, v20")
    for t in range(4): A(f"ds_read_b64 {v(100+2*t,2)}, v21 offset:{1536 - 512*t}")
    A("s_waitcnt lgkmcnt(0)")
    A("v_mov_b32 v22, s33")
    for t in range(4):
        for k in range(4): A(f"v_add_f32 v{64+4*t+k}, v{64+4*t+k}, v{80+4*t+k}")
        y = 64 + 4*t
        A(f"v_cvt_pk_bf16_f32 v24, v{y}, v{y+1}")
        A(f"v_cvt_pk_bf16_f32 v25, v{y+2}, v{y+3}")
        A(f"v_lshlrev_b32 v{y}, 16, v24")
        A(f"v_and_b32 v{y+1}, s46, v24")
        A(f"v_lshlrev_b32 v{y+2}, 16, v25")
        A(f"v_and_b32 v{y+3}, s46, v25")
        u0, u1 = 100+2*t, 101+2*t
        A(f"v_and_b32 v26, s46, v{u1}")
        A(f"v_lshlrev_b32 v27, 16, v{u1}")
        A(f"v_and_b32 v28, s46, v{u0}")
        A(f"v_lshlrev_b32 v29, 16, v{u0}")
        for k in range(4): A(f"v_mul_f32 v{26+k}, v{26+k}, v22")
        A("v_cvt_pk_bf16_f32 v24, v26, v27")
        A("v_cvt_pk_bf16_f32 v25, v28, v29")
        A("v_lshlrev_b32 v26, 16, v24")
        A("v_and_b32 v27, s46, v24")
        A("v_lshlrev_b32 v28, 16, v25")
        A("v_and_b32 v29, s46, v25")
        for k in range(4): A(f"v_add_f32 v{26+k}, v{26+k}, v{y+k}")
        A(f"v_cvt_pk_bf16_f32 v{112+2*t}, v26, v27")
        A(f"v_cvt_pk_bf16_f32 v{113+2*t}, v28, v29")
    A("s_lshl_b32 s56, s29, 12")
    A("s_lshl_b32 s57, s28, 11")
    A("s_add_u32 s56, s56, s57")
    A(f"s_add_u32 s56, s56, {WS_AT}")
    srd_off(A, 36, 4, 5, "s56", 2048)
    for t in range(4):
        A(f"buffer_store_dwordx2 {v(112+2*t,2)}, v20, s[36:39], 0 offen offset:{512*t}" + getattr(A, "hst", ""))
    stamp(A, 7)
    if getattr(A, "fused", 0) or part == "conv":
        sig2(A, ["s_and_b32 s48, s24, 7"] + cnt_off("s47", "s48", CB_AT, "s49"), "s25", 60, tmp=16)
    A(f"s_branch {endlabel}")
```

```python
from asmlib import *
CB_UT, CB_AT, CB_H = 0, 8, 16
def cnt_off(dst, idx, base, tmp="s46"):
    return [f"s_and_b32 {dst}, {idx}, 3", f"s_lshl_b32 {dst}, {dst}, 6", f"s_lshr_b32 {tmp}, {idx}, 2",
            f"s_lshl_b32 {tmp}, {tmp}, 2", f"s_add_u32 {dst}, {dst}, {tmp}", f"s_add_u32 {dst}, {dst}, {base}"]
def flag_clear(A, ws_lo, ws_hi, rb, t, srd_reg, vtmp):
    A(f"s_lshl_b32 s60, {rb}, 4")
    A(f"s_add_u32 s60, s60, {t}")
    A("s_lshl_b32 s60, s60, 7")
    A(f"s_add_u32 s60, s60, {WS_F}")
    srd_off(A, srd_reg, ws_lo, ws_hi, "s60", 128)
    A(f"v_mov_b32 v{vtmp}, 0")
    A("s_mov_b64 s[62:63], exec")
    A("s_mov_b64 exec, 1")
    A(f"buffer_store_dword v{vtmp}, v{vtmp}, s[{srd_reg}:{srd_reg+3}], 0 offen sc1")
    A("s_mov_b64 exec, s[62:63]")

def signal(A, off_sgpr_expr_lines, wave_sgpr, dbg_srd, tmp=96):
    A("s_waitcnt vmcnt(0)")
    A("s_barrier")
    sk = A.label("sig")
    A(f"s_cmp_lg_u32 {wave_sgpr}, 0")
    A(f"s_cbranch_scc1 {sk}")
    for l in off_sgpr_expr_lines: A(l)
    A(f"v_mov_b32 v{tmp}, s47")
    A(f"v_mov_b32 v{tmp+1}, 1")
    A("s_mov_b64 s[44:45], exec")
    A("s_mov_b64 exec, 1")
    A(f"buffer_atomic_add v{tmp+1}, v{tmp}, s[{dbg_srd}:{dbg_srd+3}], 0 offen sc1")
    A("s_mov_b64 exec, s[44:45]")
    A(f"{sk}:")

def gen_b(A, fin, solo=False, atpoll=False):
    SC = "" if solo else " sc1"
    nopoll = solo and not atpoll
    SCA = "" if nopoll else " sc1"
    A.c("==== B role: out tile 64 d x 64 l ====")
    if getattr(A, "bprio", 0): A(f"s_setprio {A.bprio}")
    A(f"s_load_dwordx2 s[4:5], s[0:1], {KA['ws']}")
    A(f"s_load_dwordx2 s[6:7], s[0:1], {KA['out']}")
    A(f"s_load_dwordx2 s[10:11], s[0:1], {KA['w2']}")
    A(f"s_load_dwordx2 s[12:13], s[0:1], {KA['dbg']}")
    A("v_lshrrev_b32 v1, 6, v0")
    A("v_and_b32 v2, 63, v0")
    A("v_readfirstlane_b32 s9, v1")
    if solo:
        A("s_and_b32 s8, s2, 7")
        A("s_lshr_b32 s14, s2, 3")
        A("s_and_b32 s15, s14, 3")
        A("s_lshl_b32 s8, s8, 2")
        A("s_add_u32 s8, s8, s15")
        A("s_lshr_b32 s14, s14, 2")
    else:
        A("s_and_b32 s15, s59, 1")
        A("s_lshl_b32 s8, s58, 1")
        A("s_add_u32 s8, s8, s15")
        A("s_lshr_b32 s14, s59, 1")
    A("v_lshlrev_b32 v3, 4, v2")
    A("v_lshrrev_b32 v4, 3, v2")
    A("v_and_b32 v5, 7, v2")
    A("v_lshrrev_b32 v6, 1, v4")
    A("v_and_b32 v6, 1, v6")
    A("v_lshlrev_b32 v6, 2, v6")
    A("v_xor_b32 v5, v5, v6")
    A("v_lshlrev_b32 v5, 4, v5")
    A("v_lshlrev_b32 v4, 10, v4")
    A("v_add_u32 v4, v4, v5")
    A("v_lshrrev_b32 v5, 5, v2")
    A("v_lshlrev_b32 v5, 4, v5")
    A("v_lshrrev_b32 v6, 4, v2")
    A("v_and_b32 v6, 1, v6")
    A("v_lshlrev_b32 v6, 2, v6")
    A("v_add_u32 v5, v5, v6")
    A("v_lshrrev_b32 v6, 2, v2")
    A("v_and_b32 v6, 3, v6")
    A("v_add_u32 v5, v5, v6")
    A("v_lshlrev_b32 v5, 7, v5")
    A("v_lshrrev_b32 v6, 1, v6")
    A("v_lshlrev_b32 v6, 2, v6")
    A("v_and_b32 v7, 3, v2")
    A("v_xor_b32 v6, v6, v7")
    A("v_lshlrev_b32 v6, 4, v6")
    A("v_add_u32 v5, v5, v6")
    A("s_lshl_b32 s16, s9, 14")
    A("v_add_u32 v5, s16, v5")
    A("v_xor_b32 v6, 64, v5")
    A("s_lshl_b32 s17, s14, 1")
    A("s_cmp_ge_u32 s17, 14")
    A("s_cselect_b32 s17, 0, s17")
    A("s_mov_b32 s18, s17")
    A("s_mul_i32 s19, s9, 14")
    A("s_mul_i32 s33, s8, 56")
    A("s_add_u32 s33, s33, s19")
    A("s_lshl_b32 s33, s33, 12")
    A("s_lshl_b32 s34, s19, 15")
    A("s_lshl_b32 s35, s14, 7")
    A("s_add_u32 s34, s34, s35")
    A(f"s_sub_u32 s35, {1792*1024}, s34")
    A("s_waitcnt lgkmcnt(0)")
    srd_off(A, 20, 4, 5, "s33", 14*4096)
    A("s_add_u32 s24, s10, s34")
    A("s_addc_u32 s25, s11, 0")
    A("s_and_b32 s25, s25, 0xffff")
    A("s_mov_b32 s26, s35")
    A("s_mov_b32 s27, 0x20000")
    srd(A, 28, 12, 13, 256)
    def w_issue(n):
        su = [f"s_add_u32 m0, s16, {(n % 4)*4096}", "s_lshl_b32 s36, s17, 15"]
        su += [f"s_add_u32 s{37+q}, s36, {q*(8192-1024)}" for q in range(1, 4)]
        su += ["s_add_u32 s17, s17, 1", "s_cmp_ge_u32 s17, 14", "s_cselect_b32 s17, 0, s17"]
        L = [f"buffer_load_dwordx4 v4, s[24:27], s{36 if q == 0 else 37+q} offen offset:{q*1024} lds" for q in range(4)]
        return su, L
    HS = 64
    WF = 32
    ACC = 192
    def h_issue(n):
        su = ["s_lshl_b32 s42, s18, 12", "s_add_u32 s18, s18, 1", "s_cmp_ge_u32 s18, 14", "s_cselect_b32 s18, 0, s18"]
        r = 42 + 0
        L = [f"buffer_load_dwordx4 {v(HS+(n%4)*16+4*i,4)}, v3, s[20:23], s42 offen offset:{i*1024}{SC}" for i in range(4)]
        return su, L
    def w_reads(n):
        L = []
        for dt in range(4):
            o = (n % 4)*4096 + 8*(dt & 1)
            ar = "v5" if dt < 2 else "v6"
            L.append(f"ds_read_b64_tr_b16 {v(WF+(n%2)*16+dt*4,2)}, {ar} offset:{o}")
            L.append(f"ds_read_b64_tr_b16 {v(WF+(n%2)*16+dt*4+2,2)}, {ar} offset:{o+1024}")
        return L
    def poll(offs, expect, label):
        pl = A.label(label); pd = A.label(label + "d")
        A("s_cmp_lg_u32 s9, 0")
        A(f"s_cbranch_scc1 {pd}")
        A("s_mov_b64 s[44:45], exec")
        A(f"s_mov_b64 exec, {(1 << len(offs)) - 1}")
        for i, (o, e) in enumerate(zip(offs, expect)):
            if i == 0:
                A(f"v_mov_b32 v8, {o}"); A(f"v_mov_b32 v9, {e}")
            else:
                A(f"v_writelane_b32 v8, {o}, {i}"); A(f"v_writelane_b32 v9, {e}, {i}")
        A("s_mov_b32 s46, 0")
        A(f"{pl}:")
        A("buffer_load_dword v10, v8, s[28:31], 0 offen sc1")
        A("s_waitcnt vmcnt(0)")
        A("v_cmp_lt_u32 vcc, v10, v9")
        A("s_add_u32 s46, s46, 1")
        A("s_cmp_ge_u32 s46, 0x40000")
        A(f"s_cbranch_scc1 {pl}x")
        A(f"s_cbranch_vccz {pl}x")
        A("s_sleep 16")
        A(f"s_branch {pl}")
        A(f"{pl}x:")
        A("s_mov_b64 exec, s[44:45]")
        A(f"{pd}:")
        A("s_barrier")
    if solo:
        su, L = h_issue(0)
        for l in su + L: A(l)
        su, L = w_issue(0)
        for l in su + L: A(l)
        for n in (1, 2):
            su, L = w_issue(n)
            for l in su + L: A(l)
        for i in range(64): A(f"v_mov_b32 v{ACC+i}, 0")
    else:
        w0 = A.label("w0"); nl = A.label("notlast")
        A("s_cmp_lg_u32 s9, 0")
        A(f"s_cbranch_scc1 {w0}")
        for l in cnt_off("s47", "s58", CB_H): A(l)
        A("v_mov_b32 v8, s47")
        A("v_mov_b32 v9, 1")
        A("s_mov_b64 s[44:45], exec")
        A("s_mov_b64 exec, 1")
        A("buffer_atomic_add v9, v8, s[28:31], 0 offen sc0 sc1")
        A("s_mov_b64 exec, s[44:45]")
        A(f"{w0}:")
        for n in range(3):
            su, L = w_issue(n)
            for l in su + L: A(l)
        for i in range(64): A(f"v_mov_b32 v{ACC+i}, 0")
        wd = A.label("wd")
        A("s_cmp_lg_u32 s9, 0")
        A(f"s_cbranch_scc1 {wd}")
        A("s_lshl_b32 s47, s58, 11")
        A(f"s_add_u32 s47, s47, {WS_F}")
        srd_off(A, 48, 4, 5, "s47", 2048)
        A("s_waitcnt vmcnt(12)")
        A("v_readfirstlane_b32 s47, v9")
        A("s_cmp_lg_u32 s47, 15")
        A(f"s_cbranch_scc1 {nl}")
        A("v_lshlrev_b32 v8, 7, v2")
        A("v_mov_b32 v9, 1")
        A("s_mov_b64 s[44:45], exec")
        A("s_mov_b64 exec, 0xffff")
        A("buffer_store_dword v9, v8, s[48:51], 0 offen sc1")
        A("s_mov_b64 exec, s[44:45]")
        A(f"{nl}:")
        pl = A.label("pollf")
        A("s_lshl_b32 s47, s59, 7")
        A("v_mov_b32 v8, s47")
        A("s_mov_b32 s46, 0")
        A(f"{pl}:")
        A("buffer_load_dword v10, v8, s[48:51], 0 offen sc1")
        A("s_waitcnt vmcnt(0)")
        A("v_readfirstlane_b32 s47, v10")
        A("s_cmp_eq_u32 s47, 1")
        A(f"s_cbranch_scc1 {wd}")
        A("s_add_u32 s46, s46, 1")
        A("s_cmp_ge_u32 s46, 0x40000")
        A(f"s_cbranch_scc1 {wd}")
        A(f"s_sleep {getattr(A, 'psleep', 4)}")
        A(f"s_branch {pl}")
        A(f"{wd}:")
        A("s_barrier")
    stamp(A, 6)
    for n in (range(1, 3) if solo else range(3)):
        su, L = h_issue(n)
        for l in su + L: A(l)
    A("v_and_b32 v7, 15, v2")
    A("v_lshlrev_b32 v7, 2, v7")
    A("s_lshl_b32 s47, s8, 8")
    A("s_lshl_b32 s48, s9, 6")
    A("s_add_u32 s47, s47, s48")
    A(f"s_add_u32 s47, s47, {WS_G}")
    srd_off(A, 52, 4, 5, "s47", 64)
    A("v_lshrrev_b32 v8, 3, v2")
    A("v_lshlrev_b32 v8, 12, v8")
    A("v_and_b32 v9, 7, v2")
    A("v_lshlrev_b32 v9, 4, v9")
    A("v_add_u32 v8, v8, v9")
    A("s_lshl_b32 s47, s14, 6")
    A("s_lshl_b32 s48, s9, 4")
    A("s_add_u32 s47, s47, s48")
    A("s_lshl_b32 s47, s47, 12")
    A("s_lshl_b32 s48, s8, 7")
    A("s_add_u32 s47, s47, s48")
    A(f"s_add_u32 s47, s47, {WS_AT}")
    srd_off(A, 48, 4, 5, "s47", 16*4096)
    for l in cnt_off("s47", "s14", CB_AT): A(l)
    A("v_mov_b32 v10, s47")
    A("s_mov_b32 s43, 32768")
    A("s_mov_b32 s56, 0")
    def load_at():
        A(f"buffer_load_dwordx4 v[128:131], v8, s[48:51], 0 offen{SCA}")
        A(f"buffer_load_dwordx4 v[132:135], v8, s[48:51], s43 offen{SCA}")
        A(f"buffer_load_dword v7, v7, s[52:55], 0 offen{SC}")
        A("s_mov_b32 s56, 1")
    A(f"s_waitcnt vmcnt({16 if solo else 8})")
    for l in w_reads(0): A(l)
    for st in range(14):
        if st == 0: A(f"s_waitcnt vmcnt({12 if solo else 8})")
        else:
            younger = 0
            if st + 1 < 14: younger += 4
            if st + 2 < 14: younger += 8
            if st + 1 >= 14: younger = 0
            if st <= 2:
                younger = {1: 4 + 8, 2: 12}[st] if st + 2 < 14 else younger
            A(f"s_waitcnt vmcnt({younger})")
        A("s_waitcnt lgkmcnt(0)")
        if nopoll and st == 11: load_at()
        if st == 10 and not nopoll: A("buffer_load_dword v11, v10, s[28:31], 0 offen sc1")
        if st == 12 and not nopoll:
            na = A.label("na")
            A("v_readfirstlane_b32 s47, v11")
            A("s_cmp_lt_u32 s47, 32")
            A(f"s_cbranch_scc1 {na}")
            load_at()
            A(f"{na}:")
        R = w_reads(st+1) if st + 1 < 14 else []
        if st + 3 < 14:
            su1, L1 = w_issue(st+3); su2, L2 = h_issue(st+3)
        else: su1, L1, su2, L2 = [], [], [], []
        for l in su1 + su2: A(l)
        D = L1 + L2
        k = 0
        for dt in range(4):
            for lt in range(4):
                acc = ACC + (dt*4 + lt)*4
                A(f"v_mfma_f32_16x16x32_bf16 {v(acc,4)}, {v(WF+(st%2)*16+dt*4,4)}, {v(HS+(st%4)*16+lt*4,4)}, {v(acc,4)}")
                if k % 2 == 0 and D: A(D[k//2])
                if k % 2 == 1 and R: A(R[k//2])
                k += 1
    stamp(A, 7)
    rdy = A.label("atrdy"); pl2 = A.label("polla")
    if nopoll: A(f"s_branch {rdy}")
    A("s_cmp_eq_u32 s56, 1")
    A(f"s_cbranch_scc1 {rdy}")
    A("s_mov_b32 s46, 0")
    A(f"{pl2}:")
    A("buffer_load_dword v11, v10, s[28:31], 0 offen sc1")
    A("s_waitcnt vmcnt(0)")
    A("v_readfirstlane_b32 s47, v11")
    A("s_add_u32 s46, s46, 1")
    A("s_cmp_ge_u32 s46, 0x40000")
    A(f"s_cbranch_scc1 {pl2}x")
    A("s_cmp_ge_u32 s47, 32")
    A(f"s_cbranch_scc1 {pl2}x")
    A("s_sleep 16")
    A(f"s_branch {pl2}")
    A(f"{pl2}x:")
    load_at()
    A(f"{rdy}:")
    stamp(A, 10)
    A("s_nop 7")
    A("s_nop 1")
    A("s_barrier")
    A("s_lshl_b32 s38, s9, 12")
    A("v_add_u32 v8, s38, v3")
    for lt in range(4):
        skip = A.label("skipw")
        A(f"s_cmp_eq_u32 s9, {lt}")
        A(f"s_cbranch_scc1 {skip}")
        for dt in range(4):
            A(f"ds_write_b128 v8, {v(ACC+(dt*4+lt)*4,4)} offset:{lt*16384 + dt*1024}")
        A(f"{skip}:")
    for lt in range(4):
        skip = A.label("skipo")
        A(f"s_cmp_lg_u32 s9, {lt}")
        A(f"s_cbranch_scc1 {skip}")
        for dt in range(4):
            for r in range(4): A(f"v_mov_b32 v{16+dt*4+r}, v{ACC+(dt*4+lt)*4+r}")
        A(f"{skip}:")
    A("s_lshl_b32 s38, s9, 11")
    A("s_add_u32 s38, s38, 65536")
    A("v_add_u32 v9, s38, v3")
    A("s_waitcnt vmcnt(1)")
    A("ds_write_b128 v9, v[128:131]")
    A("ds_write_b128 v9, v[132:135] offset:1024")
    A("s_waitcnt vmcnt(0) lgkmcnt(0)")
    A("s_barrier")
    A("s_lshl_b32 s38, s9, 14")
    A("v_add_u32 v8, s38, v3")
    for q in range(1, 4):
        A(f"s_add_u32 s39, s9, {q}")
        A("s_and_b32 s39, s39, 3")
        A("s_lshl_b32 s39, s39, 12")
        A(f"v_add_u32 v{8+q}, s39, v8")
    for q in range(1, 4):
        for dt in range(4):
            A(f"ds_read_b128 {v(32+(q-1)*16+dt*4,4)}, v{8+q} offset:{dt*1024}")
    A("v_lshrrev_b32 v12, 4, v2")
    A("v_lshlrev_b32 v13, 10, v12")
    A("v_lshrrev_b32 v14, 2, v2")
    A("v_and_b32 v14, 3, v14")
    A("v_lshlrev_b32 v14, 7, v14")
    A("v_add_u32 v13, v13, v14")
    A("v_and_b32 v14, 3, v2")
    A("v_lshlrev_b32 v14, 3, v14")
    A("v_add_u32 v13, v13, v14")
    A("s_lshl_b32 s38, s9, 5")
    A("s_add_u32 s38, s38, 65536")
    A("v_add_u32 v13, s38, v13")
    for dt in range(4):
        A(f"ds_read_b64_tr_b16 {v(80+dt*2,2)}, v13 offset:{(dt>>1)*4096 + (dt&1)*512}")
    A("v_sub_f32 v8, 1.0, v7")
    A("v_cvt_pk_bf16_f32 v8, v8, v8")
    A("v_and_b32 v8, 0xffff0000, v8")
    A("s_mov_b32 s40, 0xffff0000")
    A("s_waitcnt lgkmcnt(4)")
    for q in range(3):
        for i in range(16): A(f"v_add_f32 v{16+i}, v{16+i}, v{32+q*16+i}")
    A("s_waitcnt lgkmcnt(0)")
    P = range(8)
    for p in P: A(f"v_cvt_pk_bf16_f32 v{32+p}, v{16+2*p}, v{17+2*p}")
    for p in P:
        A(f"v_lshlrev_b32 v{16+2*p}, 16, v{32+p}")
        A(f"v_and_b32 v{17+2*p}, s40, v{32+p}")
        A(f"v_lshlrev_b32 v{40+2*p}, 16, v{80+p}")
        A(f"v_and_b32 v{41+2*p}, s40, v{80+p}")
    for p in P:
        A(f"v_mul_f32 v{40+2*p}, v7, v{40+2*p}")
        A(f"v_mul_f32 v{41+2*p}, v7, v{41+2*p}")
        A(f"v_mul_f32 v{16+2*p}, v8, v{16+2*p}")
        A(f"v_mul_f32 v{17+2*p}, v8, v{17+2*p}")
    for p in P:
        A(f"v_cvt_pk_bf16_f32 v{32+p}, v{40+2*p}, v{41+2*p}")
        A(f"v_cvt_pk_bf16_f32 v{56+p}, v{16+2*p}, v{17+2*p}")
    for p in P:
        A(f"v_lshlrev_b32 v{40+2*p}, 16, v{32+p}")
        A(f"v_and_b32 v{41+2*p}, s40, v{32+p}")
        A(f"v_lshlrev_b32 v{16+2*p}, 16, v{56+p}")
        A(f"v_and_b32 v{17+2*p}, s40, v{56+p}")
    for p in P:
        A(f"v_add_f32 v{40+2*p}, v{40+2*p}, v{16+2*p}")
        A(f"v_add_f32 v{41+2*p}, v{41+2*p}, v{17+2*p}")
    for p in P: A(f"v_cvt_pk_bf16_f32 v{88+p}, v{40+2*p}, v{41+2*p}")
    A("v_and_b32 v5, 15, v2")
    A("v_lshlrev_b32 v5, 10, v5")
    A("v_lshrrev_b32 v12, 4, v2")
    A("v_lshlrev_b32 v12, 4, v12")
    A("v_add_u32 v5, v5, v12")
    A("s_lshl_b32 s38, s8, 16")
    A("s_lshl_b32 s39, s9, 14")
    A("s_add_u32 s38, s38, s39")
    A("s_lshl_b32 s39, s14, 7")
    A("s_add_u32 s38, s38, s39")
    srd(A, 44, 6, 7, 2048*1024)
    A("buffer_store_dwordx4 v[88:91], v5, s[44:47], s38 offen")
    A("buffer_store_dwordx4 v[92:95], v5, s[44:47], s38 offen offset:64")
    A(f"s_branch {fin}")
```

```python
import sys
from asmlib import *
from kb import gen_kb
from kb2 import gen_b
from ka_gemm1 import gen_gemm1
from ka_side import gen_side
from ka_ssm import gen_ssm as gen_ssm2
from ka_ssm_v1 import gen_ssm as gen_ssm1
HDR = open("gated_mix__ssm_conv_s4__dense_activation_silu__prompt.s.ref").read().split("; Override launch geometry")[0]
def build(stamps=False, only=None, dump=False, opts={}):
    A = Asm(); A.stamps = stamps; A.dump = dump
    for k, val in opts.items(): setattr(A, k, val)
    A.lines.append(HDR.rstrip("\n"))
    fused = getattr(A, "fused", 0)
    KN = "gated_mix__ssm_conv_s4__dense_activation_silu__prompt_kernel" if fused else "ka_kernel"
    if fused: A("; @launch grid=(512,1,1) block=(256,1,1) lds=81920")
    else:
        if only in (None, "a"): A("; @launch kernel=ka_kernel grid=(512,1,1) block=(256,1,1) lds=81920")
        if only in (None, "b"): A("; @launch kernel=kb_kernel grid=(512,1,1) block=(256,1,1) lds=81920" if getattr(A, "cvb", 0) else "; @launch kernel=kb_kernel grid=(256,1,1) block=(256,1,1) lds=73728")
        A.now2 = getattr(A, "kb2", 0)
    A('.amdgcn_target "amdgcn-amd-amdhsa--gfx950"')
    A(".text")
    kernel_header(A, KN)
    fin = "L_ka_fin"; end = "L_ka_end"
    A("s_cmp_ge_u32 s2, 512")
    A(f"s_cbranch_scc1 {end}")
    stamp(A, 0, real=True); stamp(A, 1)
    if getattr(A, "kwarm", 0):
        A("s_load_dword s100, s[0:1], 0")
        A("s_load_dword s101, s[0:1], 64")
    if stamps:
        A("v_lshrrev_b32 v1, 6, v0\ns_nop 0\nv_readfirstlane_b32 s96, v1")
    if getattr(A, "swap", 0):
        A("s_mov_b32 s3, s2")
        A("s_xor_b32 s2, s2, 256")
    A("s_cmp_ge_u32 s2, 256")
    A("s_cbranch_scc1 L_role_ssm")
    A("s_cmp_ge_u32 s2, 224")
    A("s_cbranch_scc1 L_role_side")
    if getattr(A, "nog1", 0): A(f"s_branch {end}")
    gen_gemm1(A, fin)
    A("L_role_side:")
    if getattr(A, "noside", 0): A(f"s_branch {end}")
    gen_side(A, fin)
    A("L_role_ssm:")
    if getattr(A, "nossm", 0): A(f"s_branch {end}")
    if getattr(A, "sprio", 0): A(f"s_setprio {A.sprio}")
    if getattr(A, 'cvb', 0): gen_ssm2(A, fin, 'kgen')
    else: (gen_ssm1 if getattr(A, 'ssm1', 0) else gen_ssm2)(A, fin)
    if fused:
        A("L_role_b:")
        gen_b(A, fin)
    A(f"{fin}:")
    if stamps:
        A("s_waitcnt vmcnt(0)")
        stamp(A, 8); stamp(A, 9, real=True)
        A("v_lshrrev_b32 v1, 6, v0") if False else None
        stamp_flush(A, 13, "s4", "s5", wave_sgpr="s96")
    A(f"{end}:")
    A("s_endpgm")
    kb = None
    if not fused:
        if getattr(A, "kb2", 0):
            kernel_header(A, "kb_kernel")
            cvb = getattr(A, "cvb", 0)
            A(f"s_cmp_ge_u32 s2, {512 if cvb else 256}")
            A("s_cbranch_scc1 L_kb_end")
            stamp(A, 0, real=True); stamp(A, 1)
            A("s_mov_b32 s3, s2")
            if cvb:
                if stamps: A("v_lshrrev_b32 v1, 6, v0\ns_nop 0\nv_readfirstlane_b32 s96, v1")
                A("s_cmp_ge_u32 s2, 256")
                A("s_cbranch_scc1 L_kb_gemm")
                if getattr(A, "cprio", 0): A(f"s_setprio {A.cprio}")
                gen_ssm2(A, "L_kb_fin", "conv")
                A("L_kb_gemm:")
                A("s_sub_u32 s2, s2, 256")
            gen_b(A, "L_kb_fin", solo=True, atpoll=bool(cvb))
            A("L_kb_fin:")
            if stamps:
                A("s_waitcnt vmcnt(0)")
                stamp(A, 9); stamp(A, 8, real=True)
                A("s_mov_b32 s98, 0")
                stamp_flush(A, 11, "s4", "s5", wg=("s3" if getattr(A, "cvb", 0) else "s2"), wave_sgpr=("s96" if getattr(A, "cvb", 0) else "s9"), base=0x20000)
            A("L_kb_end:")
            A("s_endpgm")
            kb = dict(name="kb_kernel", vgpr=256, accum=256)
        else: kb = gen_kb(A)
    A('.section .rodata,"a"')
    kernel_desc(A, KN, 256, 256)
    if kb: kernel_desc(A, kb["name"], kb["vgpr"], kb["accum"])
    return A.text()
if __name__ == "__main__":
    st = "st" in sys.argv
    only = "a" if "a" in sys.argv else ("b" if "b" in sys.argv else None)
    out = sys.argv[1]
    opts = {}
    for a in sys.argv[2:]:
        if "=" in a:
            k, val = a.split("=", 1)
            try: val = int(val)
            except ValueError: val = " " + val.replace("+", " ")
            opts[k] = val
    open(out, "w").write(build(st, only, "dump" in sys.argv, opts))
```

```python
from asmlib import *
from kb2 import flag_clear

LOG2E = 0x3fb8aa3b

def gen_gemm1(A, endlabel):
    A.c("==== GEMM1 role ====")
    A(f"s_load_dwordx2 s[4:5], s[0:1], {KA['ws']}")
    A(f"s_load_dwordx2 s[6:7], s[0:1], {KA['u']}")
    A(f"s_load_dwordx2 s[8:9], s[0:1], {KA['w1']}")
    A("v_lshrrev_b32 v1, 6, v0")
    A("v_and_b32 v2, 63, v0")
    A("s_and_b32 s10, s2, 7")
    A("v_readfirstlane_b32 s11, v1")
    A("s_lshr_b32 s12, s2, 3")
    if getattr(A, "map47", 0):
        A("s_and_b32 s13, s12, 3")
        A("s_lshr_b32 s14, s10, 1")
        A("s_lshl_b32 s14, s14, 2")
        A("s_and_b32 s15, s10, 1")
        A("s_mul_i32 s15, s15, 7")
        A("s_lshr_b32 s12, s12, 2")
        A("s_add_u32 s10, s14, s13")
        A("s_add_u32 s12, s12, s15")
        A("s_lshl_b32 s13, s13, 1")
    else:
        A("s_and_b32 s13, s12, 1")
        A("s_lshl_b32 s10, s10, 1")
        A("s_add_u32 s10, s10, s13")
        A("s_lshr_b32 s12, s12, 1")
        A("s_lshl_b32 s13, s13, 2")
    A("v_lshrrev_b32 v6, 3, v2")
    A("v_and_b32 v7, 7, v2")
    A("v_lshrrev_b32 v8, 1, v6")
    A("v_xor_b32 v7, v7, v8")
    A("v_lshlrev_b32 v7, 4, v7")
    A("v_lshlrev_b32 v6, 10, v6")
    A("v_add_u32 v3, v6, v7")
    A("v_xor_b32 v5, 64, v3")
    A("v_lshrrev_b32 v6, 4, v2")
    A("v_and_b32 v7, 15, v2")
    A("v_lshrrev_b32 v8, 1, v7")
    A("v_lshlrev_b32 v9, 1, v6")
    A("v_xor_b32 v8, v8, v9")
    A("v_lshlrev_b32 v8, 1, v8")
    A("v_and_b32 v7, 1, v7")
    A("v_or_b32 v8, v8, v7")
    A("v_lshlrev_b32 v8, 4, v8")
    A("v_mul_u32_u24 v6, 3584, v6")
    A("v_add_u32 v4, v6, v8")
    A("s_lshl_b32 s14, s11, 15")
    for q in range(4):
        A(f"s_add_u32 s{40+q}, s14, {q*(8192-1024)}")
    A("s_mul_i32 s14, s11, %d" % (16*3584))
    for q in range(4):
        A(f"s_add_u32 s{44+q}, s14, {q*(4*3584-1024)}")
    A("s_lshl_b32 s15, s11, 12")
    A("s_lshl_b32 s16, s10, 17")
    A("s_lshl_b32 s17, s12, 8")
    A(f"s_sub_u32 s18, {512*3584}, s17")
    A("s_waitcnt lgkmcnt(0)")
    srd_off(A, 20, 6, 7, "s16", 128*1024)
    A("s_add_u32 s24, s8, s17")
    A("s_addc_u32 s25, s9, 0")
    A("s_and_b32 s25, s25, 0xffff")
    A("s_mov_b32 s26, s18")
    A("s_mov_b32 s27, 0x20000")
    if getattr(A, "fused", 0): flag_clear(A, 4, 5, "s10", "s12", 36, 6)
    rot = getattr(A, "rot", 0)
    A("s_and_b32 s48, s2, 7")
    if rot < 2: A("s_mov_b32 s48, 0")
    if rot:
        A("s_add_u32 s48, s48, s13")
        A("s_add_u32 s48, s48, s12")
        A("s_and_b32 s48, s48, 7")
    A("s_mov_b32 s49, s48")
    def issue_parts(n):
        slot = (n % 5) * 16384
        setup = [f"s_add_u32 m0, s15, {slot}"]
        if n % 2 == 0:
            setup.append("s_lshl_b32 s54, s48, 7")
            setup += [f"s_add_u32 s{50+q}, s{40+q}, s54" for q in range(4)]
            setup += ["s_add_u32 s48, s48, 1", "s_and_b32 s48, s48, 7"]
            ins = [f"buffer_load_dwordx4 {'v3' if q % 2 == 0 else 'v5'}, s[20:23], s{50+q} offen offset:{q*1024} lds" for q in range(4)]
        else:
            setup.append(f"s_mul_i32 s54, s49, {64*3584}")
            setup += [f"s_add_u32 s{56+q}, s{44+q}, s54" for q in range(4)]
            setup += ["s_add_u32 s49, s49, 1", "s_and_b32 s49, s49, 7"]
            ins = [f"buffer_load_dwordx4 v4, s[24:27], s{56+q} offen offset:{q*1024} lds" for q in range(4)]
        return setup, ins
    def issue2(n):
        setup, ins = issue_parts(n)
        for l in setup + ins: A(l)
    for n in (0, 1, 3): issue2(n)
    A("s_and_b32 s19, s11, 1")
    A("s_lshr_b32 s28, s11, 1")
    A("v_and_b32 v6, 31, v2")
    A("v_lshrrev_b32 v7, 5, v2")
    A("v_lshrrev_b32 v8, 1, v6")
    A("v_and_b32 v8, 7, v8")
    A("v_xor_b32 v8, v8, v7")
    A("v_lshlrev_b32 v8, 4, v8")
    A("v_lshlrev_b32 v9, 7, v6")
    A("v_add_u32 v8, v8, v9")
    A("s_lshl_b32 s29, s19, 13")
    A("v_add_u32 v8, s29, v8")
    for js in range(1, 4): A(f"v_xor_b32 v{8+js}, {js*32}, v8")
    A("v_lshrrev_b32 v14, 2, v2")
    A("v_and_b32 v14, 3, v14")
    A("v_lshlrev_b32 v15, 3, v7")
    A("v_add_u32 v15, v15, v14")
    A("v_lshlrev_b32 v15, 8, v15")
    A("v_lshrrev_b32 v12, 4, v2")
    A("v_and_b32 v12, 1, v12")
    A("s_lshl_b32 s29, s28, 2")
    A("v_or_b32 v12, s29, v12")
    A("v_lshlrev_b32 v14, 1, v14")
    A("v_xor_b32 v12, v12, v14")
    A("v_lshlrev_b32 v12, 5, v12")
    A("v_add_u32 v12, v12, v15")
    A("v_and_b32 v14, 3, v2")
    A("v_lshlrev_b32 v14, 3, v14")
    A("v_add_u32 v12, v12, v14")
    A("v_xor_b32 v13, 64, v12")
    A("v_lshrrev_b32 v14, 4, v6")
    A("v_lshlrev_b32 v14, 10, v14")
    A("v_and_b32 v15, 15, v6")
    A("v_lshlrev_b32 v15, 4, v15")
    A("v_add_u32 v14, v14, v15")
    A("v_lshlrev_b32 v15, 8, v7")
    A("v_add_u32 v14, v14, v15")
    ACC = 128
    for i in range(64): A(f"v_mov_b32 v{ACC+i}, 0")
    FR = 32
    T = 16
    def read_list(st, j, fset):
        xs = ((2*st) % 5) * 16384; wsl = ((2*st+1) % 5) * 16384
        base = FR + fset*32
        xo, wo = xs, wsl + j*8192
        pre = []
        xr = [f"v{8+2*j+sx}" for sx in range(2)]
        if xo + 4096 + 4096 > 65535:
            for sx in range(2): pre.append(f"v_add_u32 v{T+sx}, {xo}, v{8+2*j+sx}")
            xr = [f"v{T+sx}" for sx in range(2)]; xo = 0
        wr = ["v12", "v13"]
        if wo + 4096 + 1024 + 2048 > 65535:
            for ft in range(2): pre.append(f"v_add_u32 v{T+2+ft}, {wo}, v{12+ft}")
            wr = [f"v{T+2+ft}" for ft in range(2)]; wo = 0
        L = []
        for sx in range(2):
            for t in range(2):
                wb = base + (sx*2+t)*4
                L.append(f"ds_read_b64_tr_b16 {v(wb,2)}, {wr[t]} offset:{wo + sx*4096}")
                L.append(f"ds_read_b64_tr_b16 {v(wb+2,2)}, {wr[t]} offset:{wo + sx*4096 + 1024}")
                L.append(f"ds_read_b128 {v(base+16+(sx*2+t)*4,4)}, {xr[sx]} offset:{xo + t*4096}")
        return pre, L
    def mfma_list(fset):
        base = FR + fset*32
        L = []
        for sx in range(2):
            for ft in range(2):
                for lt in range(2):
                    acc = ACC + (ft*2+lt)*16
                    L.append(f"v_mfma_f32_32x32x16_bf16 {v(acc,16)}, {v(base+(sx*2+ft)*4,4)}, {v(base+16+(sx*2+lt)*4,4)}, {v(acc,16)}")
        return L
    for n in (2, 4): issue2(n)
    stamp(A, 2)
    A("s_waitcnt vmcnt(12)")
    A("s_barrier")
    stamp(A, 3)
    if getattr(A, "gprio", 0): A(f"s_setprio {A.gprio}")
    pre, L = read_list(0, 0, 0)
    for l in pre + L: A(l)
    for st in range(8):
        for j in range(2):
            if getattr(A, "ghi", 0) and 2*st + j == getattr(A, "glo", 0): A("s_setprio 1")
            if getattr(A, "ghi", 0) and 2*st + j == A.ghi: A("s_setprio 0")
            A("s_waitcnt lgkmcnt(0)")
            if j == 1 and st < 7:
                A(f"s_waitcnt vmcnt({4 if st <= 5 else 0})")
                A("s_barrier")
            if j == 0: pre, R = read_list(st, 1, 1)
            elif st < 7: pre, R = read_list(st+1, 0, 0)
            else: pre, R = [], []
            n = 2*st + 4 + j
            if n < 16 and n >= 5: setup, D = issue_parts(n)
            else: setup, D = [], []
            for l in pre + setup: A(l)
            M = mfma_list(j)
            for k in range(8):
                A(M[k])
                if k % 2 == 0 and D: A(D[k//2])
                for rr in R[2*k:2*k+2]: A(rr)
    stamp(A, 4)
    if getattr(A, "ghi", 0) >= 16: A("s_setprio 0")
    if getattr(A, "gprio", 0): A(f"s_setprio {getattr(A, 'eprio', 0)}")
    A("s_nop 7")
    A("s_nop 7")
    A("s_nop 7")
    A(f"s_mov_b32 s30, 0x{(LOG2E | 0x80000000):x}")
    A("s_mov_b32 s31, 0xffff0000")
    A("s_lshl_b32 s32, s10, 1")
    A("s_add_u32 s32, s32, s19")
    A("s_mul_i32 s32, s32, 56")
    A("s_lshl_b32 s33, s12, 2")
    A("s_add_u32 s32, s32, s33")
    A("s_lshl_b32 s33, s28, 1")
    A("s_add_u32 s32, s32, s33")
    A("s_lshl_b32 s32, s32, 12")
    srd_off(A, 36, 4, 5, "s32", 8192)
    A("s_mov_b32 s34, 4096")
    pk = getattr(A, "epk", 0)
    if pk:
        A("s_mov_b32 s60, s30")
        A("s_mov_b32 s61, s30")
        A("s_mov_b32 s62, 1.0")
        A("s_mov_b32 s63, 1.0")
    for p in range(2):
        for lt in range(4):
            o = 32 + (p*4+lt)*4
            lt2, sx = lt >> 1, lt & 1
            prs = []
            for pr in range(4):
                acc = ACC + (p*2+lt2)*16 + 8*sx
                prs.append((acc+2*pr, o+pr, 16+2*pr))
            if getattr(A, "cvz", 0):
                for (x0, od, t) in prs:
                    A(f"v_cvt_pk_bf16_f32 v{x0}, 0, v{x0}")
                    A(f"v_cvt_pk_bf16_f32 v{x0+1}, 0, v{x0+1}")
            else:
                for (x0, od, t) in prs: A(f"v_cvt_pk_bf16_f32 v{od}, v{x0}, v{x0+1}")
                for (x0, od, t) in prs:
                    A(f"v_lshlrev_b32 v{x0}, 16, v{od}")
                    A(f"v_and_b32 v{x0+1}, s31, v{od}")
            for (x0, od, t) in prs:
                if pk: A(f"v_pk_mul_f32 {v(t,2)}, {v(x0,2)}, s[60:61]")
                else:
                    A(f"v_mul_f32 v{t}, s30, v{x0}")
                    A(f"v_mul_f32 v{t+1}, s30, v{x0+1}")
            for (x0, od, t) in prs:
                A(f"v_exp_f32 v{t}, v{t}")
                A(f"v_exp_f32 v{t+1}, v{t+1}")
            for (x0, od, t) in prs:
                if pk: A(f"v_pk_add_f32 {v(t,2)}, {v(t,2)}, s[62:63]")
                else:
                    A(f"v_add_f32 v{t}, 1.0, v{t}")
                    A(f"v_add_f32 v{t+1}, 1.0, v{t+1}")
            for (x0, od, t) in prs:
                A(f"v_rcp_f32 v{t}, v{t}")
                A(f"v_rcp_f32 v{t+1}, v{t+1}")
            for (x0, od, t) in prs:
                if pk: A(f"v_pk_mul_f32 {v(t,2)}, {v(t,2)}, {v(x0,2)}")
                else:
                    A(f"v_mul_f32 v{t}, v{t}, v{x0}")
                    A(f"v_mul_f32 v{t+1}, v{t+1}, v{x0+1}")
            for (x0, od, t) in prs: A(f"v_cvt_pk_bf16_f32 v{od}, v{t}, v{t+1}")
            A(f"buffer_store_dwordx4 {v(o,4)}, v14, s[36:39], {'0' if p == 0 else 's34'} offen offset:{lt2*2048 + sx*512}" + getattr(A, "hst", ""))
    stamp(A, 5)
    if getattr(A, "fused", 0):
        A("s_mov_b32 s58, s10")
        A("s_mov_b32 s59, s12")
        A("s_waitcnt vmcnt(0)")
        A("s_barrier")
        A("s_setprio 0")
        A("s_branch L_role_b")
        return
    if getattr(A, "wbl2", False):
        A("s_waitcnt vmcnt(0)")
        A("s_barrier")
        A("s_cmp_lg_u32 s11, 0")
        A(f"s_cbranch_scc1 {endlabel}")
        A("buffer_wbl2 sc1")
        A("s_waitcnt vmcnt(0)")
    A(f"s_branch {endlabel}")
```

```python
from asmlib import *
from kb2 import signal as sig2, cnt_off, CB_UT, CB_AT
LOG2E = 0x3fb8aa3b
INV2PI = 0x3e22f983
UB = 512; CS = 4160; UCH = 4*CS
KB = 34048; KCH = 4608
FB = 43264; FCH = 4224
PT = 51712
RED = 59904
F2K = 76288

def cexp(A, dre, dim, alpha, beta, t, tmp):
    A(f"v_mul_f32 v{tmp}, {t}, v{alpha}")
    A(f"v_mul_f32 v{tmp+1}, {t}, v{beta}")
    A(f"v_exp_f32 v{tmp}, v{tmp}")
    A(f"v_fract_f32 v{tmp+1}, v{tmp+1}")
    A(f"v_cos_f32 v{dre}, v{tmp+1}")
    A(f"v_sin_f32 v{dim}, v{tmp+1}")
    A("s_nop 0")
    A(f"v_mul_f32 v{dre}, v{dre}, v{tmp}")
    A(f"v_mul_f32 v{dim}, v{dim}, v{tmp}")

def cmul(A, dre, dim, are, aim, bre, bim, tmp):
    A(f"v_mul_f32 v{tmp}, v{aim}, v{bim}")
    A(f"v_mul_f32 v{tmp+1}, v{aim}, v{bre}")
    A(f"v_fma_f32 v{dre}, v{are}, v{bre}, -v{tmp}")
    A(f"v_fma_f32 v{dim}, v{are}, v{bim}, v{tmp+1}")

def gen_ssm(A, endlabel, part="all"):
    kg = part in ("all", "kgen"); cv = part in ("all", "conv"); al = part == "all"
    W = 200
    GA = 216
    idbase = 0 if part == 'conv' else 256
    A.c("==== SSM role ====")
    for i, n in enumerate(["ws", "u", "A_re", "A_im", "B_re", "B_im", "C_re", "C_im", "log_dt", "Dskip"]):
        A(f"s_load_dwordx2 s[{4+2*i}:{5+2*i}], s[0:1], {KA[n]}")
    A(f"s_load_dwordx2 s[58:59], s[0:1], {KA['dbg']}")
    A(f"s_load_dwordx2 s[56:57], s[0:1], {KA['w2']}")
    A("v_lshrrev_b32 v1, 6, v0")
    A("v_and_b32 v2, 63, v0")
    A(f"s_sub_u32 s24, s2, {idbase}")
    A("v_readfirstlane_b32 s25, v1")
    A("s_and_b32 s26, s24, 7")
    A("s_lshr_b32 s27, s24, 3")
    A("s_lshl_b32 s26, s26, 6")
    A("s_lshl_b32 s27, s27, 1")
    A("s_add_u32 s26, s26, s27")
    A("s_lshr_b32 s27, s25, 1")
    A("s_and_b32 s28, s25, 1")
    A("s_add_u32 s29, s26, s27")
    A("s_lshl_b32 s30, s29, 8")
    A("s_lshl_b32 s31, s28, 7")
    A("s_add_u32 s30, s30, s31")
    A("v_lshlrev_b32 v3, 1, v2")
    A("v_add_u32 v3, s30, v3")
    A("s_lshl_b32 s31, s26, 1")
    A("s_waitcnt lgkmcnt(0)")
    A("s_add_u32 s20, s20, s31\ns_addc_u32 s21, s21, 0")
    A("s_add_u32 s22, s22, s31\ns_addc_u32 s23, s23, 0")
    A("s_load_dword s32, s[20:21], 0")
    A("s_load_dword s33, s[22:23], 0")
    if kg:
        A("s_and_b32 s34, s24, 7")
        A("s_lshr_b32 s35, s24, 3")
        if getattr(A, "map47", 0):
            A("s_and_b32 s48, s34, 1")
            A("s_lshr_b32 s34, s34, 1")
            A("s_lshl_b32 s34, s34, 3")
            A("s_and_b32 s47, s35, 7")
            A("s_add_u32 s34, s34, s47")
            A("s_lshr_b32 s35, s35, 3")
            A("s_lshl_b32 s48, s48, 2")
            A("s_add_u32 s35, s35, s48")
        else:
            A("s_lshl_b32 s34, s34, 2")
            A("s_and_b32 s47, s35, 3")
            A("s_add_u32 s34, s34, s47")
            A("s_lshr_b32 s35, s35, 2")
        A("s_lshl_b32 s47, s34, 16")
        A("s_lshl_b32 s48, s25, 14")
        A("s_add_u32 s47, s47, s48")
        A("s_lshl_b32 s48, s35, 7")
        A("s_add_u32 s47, s47, s48")
        srd_off(A, 40, 6, 7, "s47", 15*1024 + 128)
        A("v_lshrrev_b32 v4, 3, v2")
        A("v_lshlrev_b32 v4, 10, v4")
        A("v_and_b32 v5, 7, v2")
        A("v_lshlrev_b32 v5, 4, v5")
        A("v_add_u32 v4, v4, v5")
        A("s_lshl_b32 s48, s25, 11")
        A(f"s_add_u32 s48, s48, {RED}")
        A("s_mov_b32 m0, s48")
        A(f"s_mov_b32 s49, {8192-1024}")
        A("buffer_load_dwordx4 v4, s[40:43], 0 offen lds")
        A("buffer_load_dwordx4 v4, s[40:43], s49 offen offset:1024 lds")
        for i in range(6):
            srd(A, 36, 8+2*i, 9+2*i, 512*128*2)
            A(f"buffer_load_ushort v{8+i}, v3, s[36:39], 0 offen")
        gat2 = getattr(A, "gat2", 0) and al
        A("v_and_b32 v6, 127, v0")
        A(f"v_lshlrev_b32 v6, {1 if gat2 else 4}, v6")
        A("v_lshrrev_b32 v7, 7, v0")
        A(f"v_mul_u32_u24 v7, {FCH}, v7")
        A(f"v_add_u32 v7, {FB}, v7")
        A("s_mov_b32 s46, 0xffff0000")
        for e in range(16):
            r = GA + e
            A(f"v_add_u32 v{r}, {(256*(e>>1) + (e&1)) if gat2 else e}, v6")
            A(f"v_cvt_f32_u32 v{r}, v{r}")
            A(f"v_cvt_pk_bf16_f32 v{r}, v{r}, v{r}")
            A(f"v_and_b32 v{r}, s46, v{r}")
            A(f"v_cvt_u32_f32 v{r}, v{r}")
            A(f"v_lshl_add_u32 v{r}, v{r}, 1, v7")
    if part == "conv":
        srd(A, 60, 58, 59, 256)
        A("s_lshl_b32 s47, s29, 12")
        A("s_lshl_b32 s48, s28, 11")
        A("s_add_u32 s47, s47, s48")
        A(f"s_add_u32 s47, s47, {WS_KX}")
        srd_off(A, 36, 4, 5, "s47", 2048)
        A(f"s_mul_i32 s49, s27, {KCH}")
        A("s_add_u32 s49, s49, s48")
        A(f"s_add_u32 m0, s49, {KB+512}")
        A("v_lshlrev_b32 v4, 4, v2")
        A("s_lshl_b32 s47, s29, 12")
        A(f"s_add_u32 s47, s47, {WS_UT}")
        srd_off(A, 40, 4, 5, "s47", 4096)
        A("buffer_load_dwordx4 v4, s[36:39], 0 offen lds")
        A("buffer_load_dwordx4 v4, s[36:39], 0 offen offset:1024 lds")
        A("v_and_b32 v192, 127, v0")
        A("v_lshlrev_b32 v192, 5, v192")
        A("v_subrev_u32 v193, 8, v192")
        A("v_max_i32 v193, 0, v193")
        A(f"buffer_load_dwordx4 {v(W,4)}, v192, s[40:43], 0 offen")
        A(f"buffer_load_dwordx4 {v(W+4,4)}, v192, s[40:43], 0 offen offset:16")
        A(f"buffer_load_dwordx2 {v(W+8,2)}, v193, s[40:43], 0 offen")
        A("s_mov_b32 s46, 0xffff0000")
    if cv:
        A("v_mov_b32 v232, 0\nv_mov_b32 v233, 0\nv_mov_b32 v234, 0\nv_mov_b32 v235, 0")
        A("v_lshrrev_b32 v14, 5, v0")
        A(f"v_mul_u32_u24 v14, {KCH}, v14")
        A("v_and_b32 v15, 31, v0")
        A("v_lshlrev_b32 v15, 4, v15")
        A("v_add_u32 v14, v14, v15")
        A(f"v_add_u32 v14, {KB}, v14")
        A("v_subrev_u32 v15, 64, v0")
        A("v_lshrrev_b32 v16, 3, v15")
        A(f"v_mul_u32_u24 v16, {UCH}, v16")
        A("v_lshrrev_b32 v17, 1, v15")
        A("v_and_b32 v17, 3, v17")
        A(f"v_mul_u32_u24 v17, {CS}, v17")
        A("v_add_u32 v16, v16, v17")
        A("v_and_b32 v17, 1, v15")
        A("v_lshlrev_b32 v17, 4, v17")
        A("v_add_u32 v16, v16, v17")
        A(f"v_add_u32 v16, {UB+4096}, v16")
        A("v_cmp_gt_u32 vcc, 64, v0")
        A("s_nop 1")
        A("v_cndmask_b32 v14, v16, v14, vcc")
        A("v_cmp_gt_u32 vcc, 80, v0")
        A("s_and_saveexec_b64 s[44:45], vcc")
        pz = A.label("pz")
        A(f"s_cbranch_execz {pz}")
        A("ds_write_b128 v14, v[232:235]")
        A(f"{pz}:")
        A("s_mov_b64 exec, s[44:45]")
    if kg:
        A("v_lshrrev_b32 v14, 4, v2")
        A("v_lshlrev_b32 v15, 10, v14")
        A("v_lshrrev_b32 v16, 2, v2")
        A("v_and_b32 v16, 3, v16")
        A("v_lshlrev_b32 v16, 7, v16")
        A("v_add_u32 v15, v15, v16")
        A("v_and_b32 v16, 3, v2")
        A("v_lshlrev_b32 v16, 3, v16")
        A("v_add_u32 v15, v15, v16")
        A("s_lshl_b32 s48, s25, 5")
        A(f"s_add_u32 s48, s48, {RED}")
        A("v_add_u32 v15, s48, v15")
        A("v_and_b32 v16, 15, v2")
        A("v_lshlrev_b32 v16, 12, v16")
        A("v_lshlrev_b32 v14, 4, v14")
        A("v_add_u32 v16, v16, v14")
        A("s_lshl_b32 s47, s35, 18")
        A("s_lshl_b32 s48, s25, 16")
        A("s_add_u32 s47, s47, s48")
        A("s_lshl_b32 s48, s34, 7")
        A("s_add_u32 s47, s47, s48")
        A(f"s_add_u32 s47, s47, {WS_UT}")
        srd_off(A, 40, 4, 5, "s47", 16*4096)
        srd(A, 60, 58, 59, 256)
        A("s_waitcnt vmcnt(6)")
        A("s_barrier")
        for hf in range(2):
            for k in range(2):
                A(f"ds_read_b64_tr_b16 {v(184+hf*4+k*2,2)}, v15 offset:{hf*4096 + k*512}")
        A("s_waitcnt lgkmcnt(0)")
        for hf in range(2):
            A(f"buffer_store_dwordx4 {v(184+hf*4,4)}, v16, s[40:43], 0 offen offset:{hf*64}" + (" sc1" if al else getattr(A, "hst", "")))
        A("s_waitcnt lgkmcnt(0)")
        A("s_lshl_b32 s47, s27, 4")
        A("s_lshr_b32 s32, s32, s47")
        A("s_lshl_b32 s32, s32, 16")
        A("s_lshr_b32 s33, s33, s47")
        A("s_lshl_b32 s33, s33, 16")
        A("v_mov_b32 v14, s32")
        A(f"v_mul_f32 v14, 0x{LOG2E:x}, v14")
        A("v_exp_f32 v14, v14")
        A("s_nop 0")
        A("v_cvt_pk_bf16_f32 v14, v14, v14")
        A("v_and_b32 v14, s46, v14")
        A("s_waitcnt vmcnt(2)")
        stamp(A, 3)
        for i in range(6): A(f"v_lshlrev_b32 v{8+i}, 16, v{8+i}")
        A("v_mul_f32 v20, v14, v8")
        A("v_mul_f32 v21, v14, v9")
        A(f"v_mul_f32 v20, 0x{LOG2E:x}, v20")
        A(f"v_mul_f32 v21, 0x{INV2PI:x}, v21")
        A("v_mul_f32 v10, v14, v10")
        A("v_mul_f32 v11, v14, v11")
        cmul(A, 22, 23, 12, 13, 10, 11, 16)
        A("s_mov_b32 s48, 0x44000000")
        A("s_mov_b32 s49, 0x45000000")
        cexp(A, 24, 25, 20, 21, "s48", 16)
        cexp(A, 26, 27, 20, 21, "4.0", 16)
        cexp(A, 28, 29, 20, 21, "s49", 16)
        A("v_mul_f32 v28, v28, v22")
        A("v_fma_f32 v28, -v29, v23, v28")
        A("s_lshl_b32 s50, s27, 12")
        A("s_lshl_b32 s51, s28, 11")
        A("s_add_u32 s50, s50, s51")
        A(f"s_add_u32 s50, s50, {PT}")
        A("v_lshlrev_b32 v15, 5, v2")
        A("v_add_u32 v15, s50, v15")
        A("ds_write_b128 v15, v[20:23]")
        A("ds_write_b128 v15, v[24:27] offset:16")
        for sh in (1, 2, 4, 8):
            A("s_nop 1")
            A(f"v_add_f32_dpp v28, v28, v28 row_shr:{sh} row_mask:0xf bank_mask:0xf bound_ctrl:0")
        A("s_nop 1")
        A("v_add_f32_dpp v28, v28, v28 row_bcast:15 row_mask:0xa bank_mask:0xf")
        A("s_nop 1")
        A("v_add_f32_dpp v28, v28, v28 row_bcast:31 row_mask:0xc bank_mask:0xf")
        A("s_lshl_b32 s51, s25, 2")
        A(f"s_add_u32 s51, s51, {F2K}")
        A("v_mov_b32 v29, s51")
        A("s_mov_b64 s[44:45], exec")
        A("s_mov_b32 exec_lo, 0")
        A("s_mov_b32 exec_hi, 0x80000000")
        A("ds_write_b32 v29, v28")
        A("s_mov_b64 exec, s[44:45]")
        A("v_and_b32 v16, 15, v2")
        A("v_lshrrev_b32 v17, 4, v2")
        A("v_lshrrev_b32 v18, 2, v16")
        A("v_lshlrev_b32 v18, 3, v18")
        A("v_and_b32 v19, 3, v16")
        A("v_add_u32 v18, v18, v19")
        A("v_cvt_f32_u32 v18, v18")
        A("v_lshlrev_b32 v19, 5, v16")
        A("v_cvt_f32_u32 v19, v19")
        A("v_lshlrev_b32 v15, 7, v17")
        A("v_add_u32 v15, s50, v15")
        FA = 96
        for i in range(32): A(f"v_mov_b32 v{FA+i}, 0")
        PR = 32
        YA = 64
        XB = 72
        A("s_waitcnt lgkmcnt(0)")
        pk = getattr(A, "pk", 0)
        TY, TP, TE, TF, TT = 128, 136, 144, 160, 176
        def cmul4(dst, a, b):
            if pk:
                for m in range(4):
                    A(f"v_pk_mul_f32 {v(TT+2*m,2)}, {v(a(m),2)}, {v(b(m),2)} op_sel:[1,1] op_sel_hi:[1,0]")
                for m in range(4):
                    A(f"v_pk_fma_f32 {v(dst(m),2)}, {v(a(m),2)}, {v(b(m),2)}, {v(TT+2*m,2)} op_sel:[0,0,0] op_sel_hi:[0,1,1] neg_lo:[0,0,1]")
            else:
                for m in range(4):
                    A(f"v_mul_f32 v{TT+2*m}, v{a(m)+1}, v{b(m)+1}")
                    A(f"v_mul_f32 v{TT+2*m+1}, v{a(m)+1}, v{b(m)}")
                for m in range(4):
                    A(f"v_fma_f32 v{dst(m)}, v{a(m)}, v{b(m)}, -v{TT+2*m}")
                    A(f"v_fma_f32 v{dst(m)+1}, v{a(m)}, v{b(m)+1}, v{TT+2*m+1}")
        kloop = getattr(A, "kloop", 1)
        def rd_lo():
            for m in range(4): A(f"ds_read_b128 {v(PR+8*m,4)}, v15 offset:{m*32}")
        def rd_hi():
            for m in range(4): A(f"ds_read_b128 {v(PR+8*m+4,4)}, v15 offset:{m*32 + 16}")
        rd_lo(); rd_hi()
        A("s_and_b32 s48, s24, 7")
        for l in cnt_off("s47", "s48", CB_UT, "s49"): A(l)
        A("v_mov_b32 v192, s47")
        A("s_mov_b32 s47, 0")
        kl = A.label("kgen")
        if kloop: A(f"{kl}:")
        for ks in range(1 if kloop else 4):
            def signal():
                if not getattr(A, "mst", 0): stamp(A, 11)
                A("s_waitcnt vmcnt(0)")
                if not getattr(A, "mst", 0): stamp(A, 10)
                A("s_barrier")
                sk = A.label("sig")
                A("s_cmp_lg_u32 s25, 0")
                A(f"s_cbranch_scc1 {sk}")
                for l in cnt_off("s48", "s35", CB_UT, "s49"): A(l)
                A("v_mov_b32 v194, s48")
                A("v_mov_b32 v195, 1")
                A("s_mov_b64 s[44:45], exec")
                A("s_mov_b64 exec, 1")
                A("buffer_atomic_add v195, v194, s[60:63], 0 offen sc1")
                A("s_mov_b64 exec, s[44:45]")
                A(f"{sk}:")
            if not al: pass
            elif kloop:
                skp = A.label("nosig")
                A("s_cmp_lg_u32 s47, 1")
                A(f"s_cbranch_scc1 {skp}")
                signal()
                A(f"{skp}:")
            elif ks == 1: signal()
            if not al: pass
            elif kloop:
                skp = A.label("nopoll")
                A("s_cmp_lg_u32 s47, 3")
                A(f"s_cbranch_scc1 {skp}")
                A("buffer_load_dword v193, v192, s[60:63], 0 offen sc1")
                A(f"{skp}:")
            elif ks == 3:
                A("buffer_load_dword v193, v192, s[60:63], 0 offen sc1")
            A("v_add_u32 v15, 512, v15")
            A("s_waitcnt lgkmcnt(4)")
            P = lambda m: PR + 8*m
            for m in range(4):
                if pk:
                    A(f"v_pk_mul_f32 {v(TE+2*m,2)}, v[18:19], {v(P(m),2)} op_sel:[0,0] op_sel_hi:[0,1]")
                    A(f"v_pk_mul_f32 {v(TF+2*m,2)}, v[18:19], {v(P(m),2)} op_sel:[1,0] op_sel_hi:[1,1]")
                else:
                    A(f"v_mul_f32 v{TE+2*m}, v18, v{P(m)}")
                    A(f"v_mul_f32 v{TE+2*m+1}, v18, v{P(m)+1}")
                    A(f"v_mul_f32 v{TF+2*m}, v19, v{P(m)}")
                    A(f"v_mul_f32 v{TF+2*m+1}, v19, v{P(m)+1}")
            for T in (TE, TF):
                for m in range(4): A(f"v_fract_f32 v{T+2*m+1}, v{T+2*m+1}")
            for T, D in ((TF, TP), (TE, TY)):
                for m in range(4):
                    A(f"v_exp_f32 v{T+2*m}, v{T+2*m}")
                    A(f"v_cos_f32 v{D+2*m}, v{T+2*m+1}")
                    A(f"v_sin_f32 v{D+2*m+1}, v{T+2*m+1}")
            for T, D in ((TF, TP), (TE, TY)):
                for m in range(4):
                    if pk:
                        A(f"v_pk_mul_f32 {v(D+2*m,2)}, {v(D+2*m,2)}, {v(T+2*m,2)} op_sel:[0,0] op_sel_hi:[1,0]")
                    else:
                        A(f"v_mul_f32 v{D+2*m}, v{D+2*m}, v{T+2*m}")
                        A(f"v_mul_f32 v{D+2*m+1}, v{D+2*m+1}, v{T+2*m}")
            cmul4(lambda m: TF+2*m, lambda m: TP+2*m, lambda m: P(m)+2)
            rd_lo()
            A("s_waitcnt lgkmcnt(4)")
            for m in range(4): A(f"v_cvt_pk_bf16_f32 v{YA+m}, v{TY+2*m}, v{TY+2*m+1}")
            cmul4(lambda m: TE+2*m, lambda m: TY+2*m, lambda m: P(m)+6)
            cur, oth = TF, TP
            for m in range(4): A(f"v_cvt_pk_bf16_f32 v{YA+4+m}, v{TE+2*m}, v{TE+2*m+1}")
            for r in range(4):
                for m in range(4): A(f"v_cvt_pk_bf16_f32 v{XB+4*r+m}, v{cur+2*m}, -v{cur+2*m+1}")
                if r < 3:
                    cmul4(lambda m: oth+2*m, lambda m: cur+2*m, lambda m: P(m)+4)
                    cur, oth = oth, cur
                if r == 2: rd_hi()
            A("s_nop 1")
            for c in range(2):
                for r in range(4):
                    acc = FA + (c*4+r)*4
                    A(f"v_mfma_f32_16x16x32_bf16 {v(acc,4)}, {v(YA+4*c,4)}, {v(XB+4*r,4)}, {v(acc,4)}")
        if kloop:
            A("s_add_u32 s47, s47, 1")
            A("s_cmp_lt_u32 s47, 4")
            A(f"s_cbranch_scc1 {kl}")
    stamp(A, 4)
    if al:
        if not getattr(A, "mst", 0): stamp(A, 12)
        pl = A.label("poll"); pd = A.label("polled")
        A("s_mov_b32 s53, 0")
        A(f"{pl}:")
        A("s_waitcnt vmcnt(0)")
        A("v_readfirstlane_b32 s47, v193")
        A("s_cmp_ge_u32 s47, 32")
        A(f"s_cbranch_scc1 {pd}")
        A("s_add_u32 s53, s53, 1")
        A("s_cmp_ge_u32 s53, 0x40000")
        A(f"s_cbranch_scc1 {pd}")
        A("s_sleep 8")
        A("buffer_load_dword v193, v192, s[60:63], 0 offen sc1")
        A(f"s_branch {pl}")
        A(f"{pd}:")
        stamp(A, 2)
        A("s_lshl_b32 s47, s29, 12")
        A(f"s_add_u32 s47, s47, {WS_UT}")
        srd_off(A, 40, 4, 5, "s47", 4096)
        A("v_and_b32 v192, 127, v0")
        A("v_lshlrev_b32 v192, 5, v192")
        A("v_subrev_u32 v193, 8, v192")
        A("v_max_i32 v193, 0, v193")
        A(f"buffer_load_dwordx4 {v(W,4)}, v192, s[40:43], 0 offen sc1")
        A(f"buffer_load_dwordx4 {v(W+4,4)}, v192, s[40:43], 0 offen offset:16 sc1")
        A(f"buffer_load_dwordx2 {v(W+8,2)}, v193, s[40:43], 0 offen sc1")
    if kg:
        A("s_nop 7")
        A("v_lshlrev_b32 v14, 4, v2")
        A("s_lshl_b32 s54, s25, 12")
        A(f"s_add_u32 s54, s54, {RED}")
        A("v_add_u32 v15, s54, v14")
        A("s_xor_b32 s55, s25, 1")
        A("s_lshl_b32 s55, s55, 12")
        A(f"s_add_u32 s55, s55, {RED}")
        A("v_add_u32 v16, s55, v14")
        h1 = A.label("h1"); hd = A.label("hd")
        A("s_cmp_eq_u32 s28, 1")
        A(f"s_cbranch_scc1 {h1}")
        for c in range(2):
            for rr in range(2):
                A(f"ds_write_b128 v15, {v(FA+(c*4+2+rr)*4,4)} offset:{(c*2+rr)*1024}")
                if not getattr(A, "nomov", 0):
                    for k in range(4): A(f"v_mov_b32 v{64+(c*2+rr)*4+k}, v{FA+(c*4+rr)*4+k}")
        A(f"s_branch {hd}")
        A(f"{h1}:")
        for c in range(2):
            for rr in range(2):
                A(f"ds_write_b128 v15, {v(FA+(c*4+rr)*4,4)} offset:{(c*2+rr)*1024}")
                if not getattr(A, "nomov", 0):
                    for k in range(4): A(f"v_mov_b32 v{64+(c*2+rr)*4+k}, v{FA+(c*4+2+rr)*4+k}")
        A(f"{hd}:")
        A("s_waitcnt lgkmcnt(0)")
        A("s_barrier")
        for t in range(4): A(f"ds_read_b128 {v(80+4*t,4)}, v16 offset:{t*1024}")
        A("s_lshl_b32 s51, s27, 3")
        A(f"s_add_u32 s51, s51, {F2K}")
        A("v_mov_b32 v29, s51")
        A("ds_read_b64 v[30:31], v29")
        A("s_waitcnt lgkmcnt(0)")
        if getattr(A, "nomov", 0):
            h2 = A.label("fh2"); he = A.label("fhe")
            A("s_cmp_eq_u32 s28, 1")
            A(f"s_cbranch_scc1 {h2}")
            for hs, lab in ((0, None), (2, h2)):
                if lab: A(f"{lab}:")
                for c in range(2):
                    for rr in range(2):
                        for k in range(4): A(f"v_add_f32 v{64+(c*2+rr)*4+k}, v{FA+(c*4+hs+rr)*4+k}, v{80+(c*2+rr)*4+k}")
                if not lab: A(f"s_branch {he}")
            A(f"{he}:")
        else:
            for i in range(16): A(f"v_add_f32 v{64+i}, v{64+i}, v{80+i}")
        A("v_and_b32 v16, 15, v2")
        A("v_lshlrev_b32 v16, 6, v16")
        A("v_lshrrev_b32 v17, 4, v2")
        A("v_lshlrev_b32 v17, 4, v17")
        A("v_add_u32 v16, v16, v17")
        A(f"s_mul_i32 s56, s27, {FCH}")
        A("s_lshl_b32 s57, s28, 11")
        A("s_add_u32 s57, s57, s56")
        A(f"s_add_u32 s57, s57, {FB}")
        A("v_add_u32 v16, s57, v16")
        for rr in range(2):
            for c in range(2):
                t = 64 + (c*2+rr)*4
                A(f"v_cvt_pk_bf16_f32 v{32+rr*4+c*2}, v{t}, v{t+1}")
                A(f"v_cvt_pk_bf16_f32 v{32+rr*4+c*2+1}, v{t+2}, v{t+3}")
            A(f"ds_write_b128 v16, {v(32+rr*4,4)} offset:{rr*1024}")
        A("v_add_f32 v30, v30, v31")
        A("v_cvt_pk_bf16_f32 v30, v30, v30")
        A(f"s_add_u32 s56, s56, {FB+4096}")
        A("v_mov_b32 v29, s56")
        A("s_mov_b64 s[44:45], exec")
        A("s_mov_b64 exec, 1")
        A("ds_write_b16 v29, v30")
        A("s_mov_b64 exec, s[44:45]")
        A("s_waitcnt lgkmcnt(0)")
        A("s_barrier")
        if getattr(A, "mst", 0): stamp(A, 11)
        gat2 = getattr(A, "gat2", 0) and al
        if gat2:
            def grd(e): A(f"ds_read_u16{'_d16_hi' if e % 2 else ''} v{(40 if e % 2 else 32)+e//2}, v{GA+e}")
            def gwr(k):
                A(f"v_or_b32 v{32+k}, v{32+k}, v{40+k}")
                A(f"ds_write_b32 v16, v{32+k} offset:{KB+512+512*k}")
            for e in range(12): grd(e)
            A("v_and_b32 v16, 127, v0")
            A("v_lshlrev_b32 v16, 2, v16")
            A("v_lshrrev_b32 v17, 7, v0")
            A(f"v_mul_u32_u24 v17, {KCH}, v17")
            A("v_add_u32 v16, v16, v17")
            A("s_waitcnt lgkmcnt(6)")
            for e in range(12, 16): grd(e)
            for k in range(3): gwr(k)
            A("s_waitcnt lgkmcnt(7)")
            for k in range(3, 6): gwr(k)
            A("s_waitcnt lgkmcnt(6)")
            for k in range(6, 8): gwr(k)
        else:
            for e in range(16):
                op = "ds_read_u16" if e % 2 == 0 else "ds_read_u16_d16_hi"
                A(f"{op} v{(32 if e % 2 == 0 else 40)+e//2}, v{GA+e}")
                if e == 11: A("s_waitcnt lgkmcnt(4)")
            A("v_and_b32 v16, 127, v0")
            A("v_lshlrev_b32 v16, 5, v16")
            A("v_lshrrev_b32 v17, 7, v0")
            A(f"v_mul_u32_u24 v17, {KCH}, v17")
            A("v_add_u32 v16, v16, v17")
            A("s_waitcnt lgkmcnt(0)")
            for k in range(8): A(f"v_or_b32 v{32+k}, v{32+k}, v{40+k}")
    if al and not gat2:
        A(f"ds_write_b128 v16, v[32:35] offset:{KB+512}")
        A(f"ds_write_b128 v16, v[36:39] offset:{KB+512+16}")
    if part == "kgen":
        A("s_lshl_b32 s47, s26, 12")
        A(f"s_add_u32 s47, s47, {WS_KX}")
        srd_off(A, 36, 4, 5, "s47", 8192)
        A("v_lshlrev_b32 v16, 5, v0")
        A("buffer_store_dwordx4 v[32:35], v16, s[36:39], 0 offen" + getattr(A, "hst", ""))
        A("buffer_store_dwordx4 v[36:39], v16, s[36:39], 0 offen offset:16" + getattr(A, "hst", ""))
    if part == "conv":
        A("s_waitcnt lgkmcnt(0)")
        A("s_lshl_b32 s47, s27, 4")
        A("s_lshr_b32 s33, s33, s47")
        A("s_lshl_b32 s33, s33, 16")
        A("s_lshl_b32 s54, s25, 12")
        A(f"s_add_u32 s54, s54, {RED}")
        A("s_xor_b32 s55, s25, 1")
        A("s_lshl_b32 s55, s55, 12")
        A(f"s_add_u32 s55, s55, {RED}")
    if cv:
        if getattr(A, "mst", 0): stamp(A, 10)
        A("s_waitcnt vmcnt(0)")
        if getattr(A, "mst", 0): stamp(A, 12)
        A("v_and_b32 v14, 127, v0")
        A("v_cmp_eq_u32 vcc, 0, v14")
        A("s_mov_b32 s52, 0xffff")
        A(f"v_cndmask_b32 v{W+8}, v{W+8}, 0, vcc" if False else f"v_mov_b32 v20, 0")
        A(f"v_cndmask_b32 v{W+8}, v{W+8}, v20, vcc")
        A(f"v_cndmask_b32 v{W+9}, v{W+9}, v20, vcc")
        A("v_sub_u32 v14, 127, v14")
        A("v_lshlrev_b32 v14, 5, v14")
        A(f"s_mul_i32 s53, s27, {UCH}")
        A("v_add_u32 v14, s53, v14")
        def PRG(p): return W + p if p >= 0 else W + 10 + p
        Q = 128
        for c in range(4):
            for b in range(2):
                q = Q + (c*2+b)*4
                for k in range(4):
                    j = 8*b + 7 - c - 2*k
                    if j % 2:
                        p = (j-1)//2
                        A(f"v_alignbit_b32 v{q+k}, v{PRG(p)}, v{PRG(p)}, 16")
                    else:
                        p = j//2
                        A(f"v_bfi_b32 v{q+k}, s52, v{PRG(p)}, v{PRG(p-1)}")
                A(f"ds_write_b128 v14, {v(q,4)} offset:{UB + c*CS + (1-b)*16}")
        A("s_waitcnt lgkmcnt(0)")
        A("s_barrier")
        stamp(A, 5)
        if getattr(A, "dump", False):
            dl = A.label("nodump")
            A("s_cmp_lg_u32 s24, 0")
            A(f"s_cbranch_scc1 {dl}")
            srd_off(A, 36, 4, 5, 0x2000000, 81920)
            A("v_lshlrev_b32 v14, 4, v0")
            for k in range(20):
                A(f"ds_read_b128 v[32:35], v14 offset:{k*4096}" if k < 16 else f"ds_read_b128 v[32:35], v13 offset:{(k-16)*4096}")
                if k == 15: A("v_add_u32 v13, 65536, v14")
                A("s_waitcnt lgkmcnt(0)")
                A(f"s_mov_b32 s58, {k*4096}")
                A("buffer_store_dwordx4 v[32:35], v14, s[36:39], s58 offen")
                A("s_waitcnt vmcnt(0)")
            A(f"{dl}:")
    if kg:
        if (getattr(A, "fused", 0) or getattr(A, "kb2", 0)) and getattr(A, "w2pf", 1):
            A(f"s_load_dwordx2 s[50:51], s[0:1], {KA['w2']}")
            A("s_lshr_b32 s48, s24, 3")
            A("s_mul_i32 s48, s48, 448")
            A("s_mul_i32 s49, s25, 112")
            A("s_add_u32 s48, s48, s49")
            A("s_lshl_b32 s48, s48, 7")
            A("v_min_u32 v196, 55, v2")
            A("v_lshlrev_b32 v196, 7, v196")
            A("s_waitcnt lgkmcnt(0)")
            srd(A, 36, 50, 51, 1792*1024)
            A("buffer_load_dword v197, v196, s[36:39], s48 offen")
            A("s_add_u32 s48, s48, 7168")
            A("buffer_load_dword v198, v196, s[36:39], s48 offen")
    if part == 'kgen':
        stamp(A, 7)
        A(f"s_branch {endlabel}")
        return
    A("v_and_b32 v16, 15, v2")
    A("v_lshrrev_b32 v17, 4, v2")
    A("v_lshlrev_b32 v18, 5, v16")
    A("v_lshlrev_b32 v19, 4, v17")
    A("v_add_u32 v18, v18, v19")
    A(f"s_mul_i32 s56, s27, {KCH}")
    A("s_lshl_b32 s57, s28, 8")
    A("s_sub_u32 s56, s56, s57")
    A(f"s_add_u32 s56, s56, {KB+480-192}")
    A("v_add_u32 v18, s56, v18")
    A("v_and_b32 v20, 3, v16")
    A("v_sub_u32 v20, 3, v20")
    A(f"v_mul_u32_u24 v20, {CS}, v20")
    A("v_add_u32 v20, v20, v19")
    A("v_lshrrev_b32 v21, 2, v16")
    A("v_lshlrev_b32 v21, 3, v21")
    A("v_sub_u32 v20, v20, v21")
    A(f"s_mul_i32 s56, s27, {UCH}")
    A("s_sub_u32 s56, s56, s57")
    A(f"s_add_u32 s56, s56, {UB+24}")
    A("v_add_u32 v19, s56, v20")
    CA = 32
    for i in range(32): A(f"v_mov_b32 v{CA+i}, 0")
    FS = 64
    def creads(rp, fs):
        b = FS + fs*64
        for sg in range(8):
            o = 4032 - 512*sg - 64*rp
            A(f"ds_read_b64 {v(b+4*sg,2)}, v19 offset:{o}")
            A(f"ds_read_b64 {v(b+4*sg+2,2)}, v19 offset:{o+8}")
            A(f"ds_read_b128 {v(b+32+4*sg,4)}, v18 offset:{192 + 512*sg - 64*rp}")
    def cmf(fs):
        b = FS + fs*64
        pairs = sorted([(sg, q) for q in range(8) for sg in range(q+1)], key=lambda p: (max(p[0], p[1]-p[0]), p[1]))
        return pairs, b
    creads(0, 0)
    for rp in range(4):
        fs = rp % 2
        if rp + 1 < 4:
            creads(rp+1, 1-fs)
            A("s_waitcnt lgkmcnt(15)")
        pairs, b = cmf(fs)
        if rp + 1 < 4:
            pass
        else:
            A("s_waitcnt lgkmcnt(0)")
        for (sg, q) in pairs:
            A(f"v_mfma_f32_16x16x32_bf16 {v(CA+4*q,4)}, {v(b+4*sg,4)}, {v(b+32+4*(q-sg),4)}, {v(CA+4*q,4)}")
    stamp(A, 6)
    A("s_nop 7")
    A("v_lshlrev_b32 v14, 4, v2")
    A("v_add_u32 v15, s54, v14")
    A("v_add_u32 v16, s55, v14")
    h1 = A.label("h1"); hd = A.label("hd")
    A("s_cmp_eq_u32 s28, 1")
    A(f"s_cbranch_scc1 {h1}")
    nomov = getattr(A, "nomov", 0)
    for t in range(4):
        A(f"ds_write_b128 v15, {v(CA+16+4*t,4)} offset:{t*1024}")
        if not nomov:
            for k in range(4): A(f"v_mov_b32 v{64+4*t+k}, v{CA+4*t+k}")
    A(f"s_branch {hd}")
    A(f"{h1}:")
    for t in range(4):
        A(f"ds_write_b128 v15, {v(CA+4*t,4)} offset:{t*1024}")
        if not nomov:
            for k in range(4): A(f"v_mov_b32 v{64+4*t+k}, v{CA+16+4*t+k}")
    A(f"{hd}:")
    A("s_waitcnt lgkmcnt(0)")
    A("s_barrier")
    for t in range(4): A(f"ds_read_b128 {v(80+4*t,4)}, v16 offset:{t*1024}")
    A("v_and_b32 v16, 15, v2")
    A("v_lshrrev_b32 v17, 4, v2")
    A("v_lshlrev_b32 v20, 5, v16")
    A("v_lshlrev_b32 v21, 3, v17")
    A("v_add_u32 v20, v20, v21")
    A(f"s_mul_i32 s56, s27, {UCH}")
    A("s_lshl_b32 s57, s28, 11")
    A("s_sub_u32 s56, s56, s57")
    A(f"s_add_u32 s56, s56, {UB + 4088 - 1536}")
    A("v_sub_u32 v21, s56, v20")
    for t in range(4): A(f"ds_read_b64 {v(100+2*t,2)}, v21 offset:{1536 - 512*t}")
    A("s_waitcnt lgkmcnt(0)")
    A("v_mov_b32 v22, s33")
    if nomov:
        h2 = A.label("h2"); he = A.label("he")
        A("s_cmp_eq_u32 s28, 1")
        A(f"s_cbranch_scc1 {h2}")
        for i in range(16): A(f"v_add_f32 v{64+i}, v{CA+i}, v{80+i}")
        A(f"s_branch {he}")
        A(f"{h2}:")
        for i in range(16): A(f"v_add_f32 v{64+i}, v{CA+16+i}, v{80+i}")
        A(f"{he}:")
    for t in range(4):
        if not nomov:
            for k in range(4): A(f"v_add_f32 v{64+4*t+k}, v{64+4*t+k}, v{80+4*t+k}")
        y = 64 + 4*t
        cvz = getattr(A, "cvz", 0)
        if cvz:
            for k in range(4): A(f"v_cvt_pk_bf16_f32 v{y+k}, 0, v{y+k}")
        else:
            A(f"v_cvt_pk_bf16_f32 v24, v{y}, v{y+1}")
            A(f"v_cvt_pk_bf16_f32 v25, v{y+2}, v{y+3}")
            A(f"v_lshlrev_b32 v{y}, 16, v24")
            A(f"v_and_b32 v{y+1}, s46, v24")
            A(f"v_lshlrev_b32 v{y+2}, 16, v25")
            A(f"v_and_b32 v{y+3}, s46, v25")
        u0, u1 = 100+2*t, 101+2*t
        A(f"v_and_b32 v26, s46, v{u1}")
        A(f"v_lshlrev_b32 v27, 16, v{u1}")
        A(f"v_and_b32 v28, s46, v{u0}")
        A(f"v_lshlrev_b32 v29, 16, v{u0}")
        for k in range(4): A(f"v_mul_f32 v{26+k}, v{26+k}, v22")
        if cvz:
            for k in range(4): A(f"v_cvt_pk_bf16_f32 v{26+k}, 0, v{26+k}")
        else:
            A("v_cvt_pk_bf16_f32 v24, v26, v27")
            A("v_cvt_pk_bf16_f32 v25, v28, v29")
            A("v_lshlrev_b32 v26, 16, v24")
            A("v_and_b32 v27, s46, v24")
            A("v_lshlrev_b32 v28, 16, v25")
            A("v_and_b32 v29, s46, v25")
        for k in range(4): A(f"v_add_f32 v{26+k}, v{26+k}, v{y+k}")
        A(f"v_cvt_pk_bf16_f32 v{112+2*t}, v26, v27")
        A(f"v_cvt_pk_bf16_f32 v{113+2*t}, v28, v29")
    A("s_lshl_b32 s56, s29, 12")
    A("s_lshl_b32 s57, s28, 11")
    A("s_add_u32 s56, s56, s57")
    A(f"s_add_u32 s56, s56, {WS_AT}")
    srd_off(A, 36, 4, 5, "s56", 2048)
    for t in range(4):
        A(f"buffer_store_dwordx2 {v(112+2*t,2)}, v20, s[36:39], 0 offen offset:{512*t}" + getattr(A, "hst", ""))
    stamp(A, 7)
    if getattr(A, "fused", 0) or part == "conv":
        sig2(A, ["s_and_b32 s48, s24, 7"] + cnt_off("s47", "s48", CB_AT, "s49"), "s25", 60, tmp=16)
    A(f"s_branch {endlabel}")
```

```python
from asmlib import *

def gen_kb(A, name="kb_kernel"):
    NSET = getattr(A, 'nset', 4)
    kernel_header(A, name)
    end = A.label("kb_end")
    A("s_cmp_ge_u32 s2, 256")
    A(f"s_cbranch_scc1 {end}")
    stamp(A, 0, real=True); stamp(A, 1)
    A(f"s_load_dwordx2 s[4:5], s[0:1], {KA['ws']}")
    A(f"s_load_dwordx2 s[6:7], s[0:1], {KA['out']}")
    A("v_lshrrev_b32 v1, 6, v0")
    A("v_and_b32 v2, 63, v0")
    A("s_and_b32 s8, s2, 7")
    A("v_readfirstlane_b32 s9, v1")
    A("s_lshr_b32 s10, s2, 3")
    A("s_and_b32 s11, s10, 3")
    A("s_lshl_b32 s8, s8, 2")
    A("s_add_u32 s8, s8, s11")
    A("s_lshr_b32 s10, s10, 2")
    A("v_lshlrev_b32 v3, 4, v2")
    A("s_mul_i32 s12, s9, 14")
    A("s_mul_i32 s13, s8, 56")
    A("s_add_u32 s13, s13, s12")
    A("s_lshl_b32 s13, s13, 12")
    A("s_mul_i32 s14, s10, 56")
    A("s_add_u32 s14, s14, s12")
    A("s_lshl_b32 s14, s14, 12")
    A(f"s_add_u32 s14, s14, {WS_W2F}")
    A("v_lshrrev_b32 v4, 3, v2")
    A("v_lshlrev_b32 v4, 12, v4")
    A("v_and_b32 v5, 7, v2")
    A("v_lshlrev_b32 v5, 4, v5")
    A("v_add_u32 v4, v4, v5")
    A("s_lshl_b32 s15, s10, 6")
    A("s_lshl_b32 s16, s9, 4")
    A("s_add_u32 s15, s15, s16")
    A("s_lshl_b32 s15, s15, 12")
    A("s_lshl_b32 s16, s8, 7")
    A("s_add_u32 s15, s15, s16")
    A(f"s_add_u32 s15, s15, {WS_AT}")
    A("v_and_b32 v5, 15, v2")
    A("v_lshlrev_b32 v6, 2, v5")
    A("s_lshl_b32 s17, s8, 8")
    A("s_lshl_b32 s18, s9, 6")
    A("s_add_u32 s17, s17, s18")
    A(f"s_add_u32 s17, s17, {WS_G}")
    A("s_waitcnt lgkmcnt(0)")
    srd_off(A, 20, 4, 5, "s13", 14*4096)
    srd_off(A, 24, 4, 5, "s14", 14*4096)
    srd_off(A, 28, 4, 5, "s15", 16*4096)
    srd_off(A, 32, 4, 5, "s17", 64)
    A("s_lshl_b32 s19, s9, 11")
    A("s_add_u32 s19, s19, 65536")
    A("s_mov_b32 m0, s19")
    A("s_mov_b32 s36, 32768")
    A("buffer_load_dwordx4 v4, s[28:31], 0 offen lds")
    A("s_add_u32 s19, s19, 1024")
    A("s_mov_b32 m0, s19")
    A("s_nop 0")
    A("buffer_load_dwordx4 v4, s[28:31], s36 offen lds")
    A("buffer_load_dword v7, v6, s[32:35], 0 offen")
    SET0 = 8
    def setreg(k, i): return SET0 + (k % NSET) * 32 + i * 4
    def issue_list(step):
        L = []
        for i in range(4):
            L.append(f"buffer_load_dwordx4 {v(setreg(step, i),4)}, v3, s[24:27], s{48+step%2} offen offset:{i*1024}")
            L.append(f"buffer_load_dwordx4 {v(setreg(step, 4+i),4)}, v3, s[20:23], s{48+step%2} offen offset:{i*1024}")
        return [f"s_mov_b32 s{48+step%2}, {step*4096}"], L
    for st in range(NSET-1):
        su, L = issue_list(st)
        for l in su + L: A(l)
    for i in range(64): A(f"v_accvgpr_write_b32 a{i}, 0")
    for st in range(14):
        last = min(st + NSET - 2, 13)
        A(f"s_waitcnt vmcnt({8*(last-st)})")
        if st == 0: stamp(A, 2)
        if st == 7: stamp(A, 3)
        nx = st + NSET - 1
        su, L = issue_list(nx) if nx < 14 else ([], [])
        for l in su: A(l)
        k = 0
        for dt in range(4):
            for lt in range(4):
                acc = (dt*4 + lt)*4
                A(f"v_mfma_f32_16x16x32_bf16 {a_(acc,4)}, {v(setreg(st,dt),4)}, {v(setreg(st,4+lt),4)}, {a_(acc,4)}")
                if k % 2 == 0 and L: A(L[k//2])
                k += 1
    stamp(A, 4)
    A("s_nop 7")
    A("s_nop 1")
    A("s_lshl_b32 s38, s9, 12")
    A("v_add_u32 v8, s38, v3")
    for lt in range(4):
        skip = A.label("skipw")
        A(f"s_cmp_eq_u32 s9, {lt}")
        A(f"s_cbranch_scc1 {skip}")
        for dt in range(4):
            acc = (dt*4 + lt)*4
            A(f"ds_write_b128 v8, {a_(acc,4)} offset:{lt*16384 + dt*1024}")
        A(f"{skip}:")
    for lt in range(4):
        skip = A.label("skipo")
        A(f"s_cmp_lg_u32 s9, {lt}")
        A(f"s_cbranch_scc1 {skip}")
        for dt in range(4):
            for r in range(4):
                A(f"v_accvgpr_read_b32 v{16+dt*4+r}, a{(dt*4+lt)*4+r}")
        A(f"{skip}:")
    A("s_waitcnt vmcnt(0) lgkmcnt(0)")
    A("s_barrier")
    A("s_lshl_b32 s38, s9, 14")
    A("v_add_u32 v8, s38, v3")
    for q in range(1, 4):
        A(f"s_add_u32 s39, s9, {q}")
        A("s_and_b32 s39, s39, 3")
        A("s_lshl_b32 s39, s39, 12")
        A(f"v_add_u32 v{8+q}, s39, v8")
    for q in range(1, 4):
        for dt in range(4):
            A(f"ds_read_b128 {v(32+(q-1)*16+dt*4,4)}, v{8+q} offset:{dt*1024}")
    A("v_lshrrev_b32 v12, 4, v2")
    A("v_lshlrev_b32 v13, 10, v12")
    A("v_lshrrev_b32 v14, 2, v2")
    A("v_and_b32 v14, 3, v14")
    A("v_lshlrev_b32 v14, 7, v14")
    A("v_add_u32 v13, v13, v14")
    A("v_and_b32 v14, 3, v2")
    A("v_lshlrev_b32 v14, 3, v14")
    A("v_add_u32 v13, v13, v14")
    A("s_lshl_b32 s38, s9, 5")
    A("s_add_u32 s38, s38, 65536")
    A("v_add_u32 v13, s38, v13")
    for dt in range(4):
        A(f"ds_read_b64_tr_b16 {v(80+dt*2,2)}, v13 offset:{(dt>>1)*4096 + (dt&1)*512}")
    A("s_waitcnt lgkmcnt(4)")
    for q in range(3):
        for i in range(16):
            A(f"v_add_f32 v{16+i}, v{16+i}, v{32+q*16+i}")
    A("v_sub_f32 v8, 1.0, v7")
    A("v_cvt_pk_bf16_f32 v8, v8, v8")
    A("v_and_b32 v8, 0xffff0000, v8")
    A("s_waitcnt lgkmcnt(0)")
    A("s_mov_b32 s40, 0xffff0000")
    cvz = getattr(A, "cvz", 0)
    for p in range(8):
        b0, b1 = 16+2*p, 17+2*p
        if cvz:
            A(f"v_cvt_pk_bf16_f32 v{b0}, 0, v{b0}")
            A(f"v_cvt_pk_bf16_f32 v{b1}, 0, v{b1}")
        else:
            A(f"v_cvt_pk_bf16_f32 v9, v{b0}, v{b1}")
            A(f"v_lshlrev_b32 v{b0}, 16, v9")
            A(f"v_and_b32 v{b1}, s40, v9")
        A(f"v_lshlrev_b32 v10, 16, v{80+p}")
        A(f"v_and_b32 v11, s40, v{80+p}")
        A(f"v_mul_f32 v10, v7, v10")
        A(f"v_mul_f32 v11, v7, v11")
        A(f"v_mul_f32 v{b0}, v8, v{b0}")
        A(f"v_mul_f32 v{b1}, v8, v{b1}")
        if cvz:
            for r in (10, 11, b0, b1): A(f"v_cvt_pk_bf16_f32 v{r}, 0, v{r}")
        else:
            A(f"v_cvt_pk_bf16_f32 v9, v10, v11")
            A(f"v_cvt_pk_bf16_f32 v12, v{b0}, v{b1}")
            A(f"v_lshlrev_b32 v10, 16, v9")
            A(f"v_and_b32 v11, s40, v9")
            A(f"v_lshlrev_b32 v{b0}, 16, v12")
            A(f"v_and_b32 v{b1}, s40, v12")
        A(f"v_add_f32 v10, v10, v{b0}")
        A(f"v_add_f32 v11, v11, v{b1}")
        A(f"v_cvt_pk_bf16_f32 v{88+p}, v10, v11")
    A("v_and_b32 v5, 15, v2")
    A("v_lshlrev_b32 v5, 10, v5")
    A("v_lshrrev_b32 v12, 4, v2")
    A("v_lshlrev_b32 v12, 4, v12")
    A("v_add_u32 v5, v5, v12")
    A("s_lshl_b32 s38, s8, 16")
    A("s_lshl_b32 s39, s9, 14")
    A("s_add_u32 s38, s38, s39")
    A("s_lshl_b32 s39, s10, 7")
    A("s_add_u32 s38, s38, s39")
    srd(A, 44, 6, 7, 2048*1024)
    ost = getattr(A, "ost", "")
    A("buffer_store_dwordx4 v[88:91], v5, s[44:47], s38 offen" + ost)
    A("buffer_store_dwordx4 v[92:95], v5, s[44:47], s38 offen offset:64" + ost)
    if getattr(A, "stamps", False):
        A("s_waitcnt vmcnt(0)")
        stamp(A, 5); stamp(A, 6, real=True)
        stamp_flush(A, 7, "s4", "s5", wave_sgpr="s9", base=0x20000)
    A(f"{end}:")
    A("s_endpgm")
    return dict(name=name, vgpr=256+64, accum=256)
```

```python
from asmlib import *
from kb2 import signal as sig2, cnt_off, CB_UT, CB_AT
LOG2E = 0x3fb8aa3b
INV2PI = 0x3e22f983
UB = 512; CS = 4160; UCH = 4*CS
KB = 34048; KCH = 4608
FB = 43264; FCH = 4224
PT = 51712
RED = 59904
F2K = 76288

def cexp(A, dre, dim, alpha, beta, t, tmp):
    A(f"v_mul_f32 v{tmp}, {t}, v{alpha}")
    A(f"v_mul_f32 v{tmp+1}, {t}, v{beta}")
    A(f"v_exp_f32 v{tmp}, v{tmp}")
    A(f"v_fract_f32 v{tmp+1}, v{tmp+1}")
    A(f"v_cos_f32 v{dre}, v{tmp+1}")
    A(f"v_sin_f32 v{dim}, v{tmp+1}")
    A("s_nop 0")
    A(f"v_mul_f32 v{dre}, v{dre}, v{tmp}")
    A(f"v_mul_f32 v{dim}, v{dim}, v{tmp}")

def cmul(A, dre, dim, are, aim, bre, bim, tmp):
    A(f"v_mul_f32 v{tmp}, v{aim}, v{bim}")
    A(f"v_mul_f32 v{tmp+1}, v{aim}, v{bre}")
    A(f"v_fma_f32 v{dre}, v{are}, v{bre}, -v{tmp}")
    A(f"v_fma_f32 v{dim}, v{are}, v{bim}, v{tmp+1}")

def gen_ssm(A, endlabel, part="all"):
    kg = part in ("all", "kgen"); cv = part in ("all", "conv"); al = part == "all"
    W = 200
    GA = 216
    idbase = 0 if part == 'conv' else 256
    def ucopies():
        if getattr(A, "mst", 0): stamp(A, 10)
        A("s_waitcnt vmcnt(0)")
        if getattr(A, "mst", 0): stamp(A, 12)
        A("v_and_b32 v14, 127, v0")
        A("v_cmp_eq_u32 vcc, 0, v14")
        A("s_mov_b32 s52, 0xffff")
        A(f"v_cndmask_b32 v{W+8}, v{W+8}, 0, vcc" if False else f"v_mov_b32 v20, 0")
        A(f"v_cndmask_b32 v{W+8}, v{W+8}, v20, vcc")
        A(f"v_cndmask_b32 v{W+9}, v{W+9}, v20, vcc")
        A("v_sub_u32 v14, 127, v14")
        A("v_lshlrev_b32 v14, 5, v14")
        A(f"s_mul_i32 s53, s27, {UCH}")
        A("v_add_u32 v14, s53, v14")
        def PRG(p): return W + p if p >= 0 else W + 10 + p
        Q = 128
        for c in range(4):
            for b in range(2):
                q = Q + (c*2+b)*4
                for k in range(4):
                    j = 8*b + 7 - c - 2*k
                    if j % 2:
                        p = (j-1)//2
                        A(f"v_alignbit_b32 v{q+k}, v{PRG(p)}, v{PRG(p)}, 16")
                    else:
                        p = j//2
                        A(f"v_bfi_b32 v{q+k}, s52, v{PRG(p)}, v{PRG(p-1)}")
                A(f"ds_write_b128 v14, {v(q,4)} offset:{UB + c*CS + (1-b)*16}")
    def conv_addr():
        A("v_and_b32 v16, 15, v2")
        A("v_lshrrev_b32 v17, 4, v2")
        A("v_lshlrev_b32 v18, 5, v16")
        A("v_lshlrev_b32 v19, 4, v17")
        A("v_add_u32 v18, v18, v19")
        A(f"s_mul_i32 s56, s27, {KCH}")
        A("s_lshl_b32 s57, s28, 8")
        A("s_sub_u32 s56, s56, s57")
        A(f"s_add_u32 s56, s56, {KB+480-192}")
        A("v_add_u32 v18, s56, v18")
        A("v_and_b32 v20, 3, v16")
        A("v_sub_u32 v20, 3, v20")
        A(f"v_mul_u32_u24 v20, {CS}, v20")
        A("v_add_u32 v20, v20, v19")
        A("v_lshrrev_b32 v21, 2, v16")
        A("v_lshlrev_b32 v21, 3, v21")
        A("v_sub_u32 v20, v20, v21")
        A(f"s_mul_i32 s56, s27, {UCH}")
        A("s_sub_u32 s56, s56, s57")
        A(f"s_add_u32 s56, s56, {UB+24}")
        A("v_add_u32 v19, s56, v20")
    A.c("==== SSM role ====")
    for i, n in enumerate(["ws", "u", "A_re", "A_im", "B_re", "B_im", "C_re", "C_im", "log_dt", "Dskip"]):
        A(f"s_load_dwordx2 s[{4+2*i}:{5+2*i}], s[0:1], {KA[n]}")
    A(f"s_load_dwordx2 s[58:59], s[0:1], {KA['dbg']}")
    A(f"s_load_dwordx2 s[56:57], s[0:1], {KA['w2']}")
    A("v_lshrrev_b32 v1, 6, v0")
    A("v_and_b32 v2, 63, v0")
    A(f"s_sub_u32 s24, s2, {idbase}")
    A("v_readfirstlane_b32 s25, v1")
    A("s_and_b32 s26, s24, 7")
    A("s_lshr_b32 s27, s24, 3")
    A("s_lshl_b32 s26, s26, 6")
    A("s_lshl_b32 s27, s27, 1")
    A("s_add_u32 s26, s26, s27")
    A("s_lshr_b32 s27, s25, 1")
    A("s_and_b32 s28, s25, 1")
    A("s_add_u32 s29, s26, s27")
    A("s_lshl_b32 s30, s29, 8")
    A("s_lshl_b32 s31, s28, 7")
    A("s_add_u32 s30, s30, s31")
    A("v_lshlrev_b32 v3, 1, v2")
    A("v_add_u32 v3, s30, v3")
    A("s_lshl_b32 s31, s26, 1")
    A("s_waitcnt lgkmcnt(0)")
    A("s_add_u32 s20, s20, s31\ns_addc_u32 s21, s21, 0")
    A("s_add_u32 s22, s22, s31\ns_addc_u32 s23, s23, 0")
    A("s_load_dword s32, s[20:21], 0")
    A("s_load_dword s33, s[22:23], 0")
    if kg:
        A("s_and_b32 s34, s24, 7")
        A("s_lshr_b32 s35, s24, 3")
        if getattr(A, "map47", 0):
            A("s_and_b32 s48, s34, 1")
            A("s_lshr_b32 s34, s34, 1")
            A("s_lshl_b32 s34, s34, 3")
            A("s_and_b32 s47, s35, 7")
            A("s_add_u32 s34, s34, s47")
            A("s_lshr_b32 s35, s35, 3")
            A("s_lshl_b32 s48, s48, 2")
            A("s_add_u32 s35, s35, s48")
        else:
            A("s_lshl_b32 s34, s34, 2")
            A("s_and_b32 s47, s35, 3")
            A("s_add_u32 s34, s34, s47")
            A("s_lshr_b32 s35, s35, 2")
        A("s_lshl_b32 s47, s34, 16")
        A("s_lshl_b32 s48, s25, 14")
        A("s_add_u32 s47, s47, s48")
        A("s_lshl_b32 s48, s35, 7")
        A("s_add_u32 s47, s47, s48")
        srd_off(A, 40, 6, 7, "s47", 15*1024 + 128)
        A("v_lshrrev_b32 v4, 3, v2")
        A("v_lshlrev_b32 v4, 10, v4")
        A("v_and_b32 v5, 7, v2")
        A("v_lshlrev_b32 v5, 4, v5")
        A("v_add_u32 v4, v4, v5")
        A("s_lshl_b32 s48, s25, 11")
        A(f"s_add_u32 s48, s48, {RED}")
        A("s_mov_b32 m0, s48")
        A(f"s_mov_b32 s49, {8192-1024}")
        A("buffer_load_dwordx4 v4, s[40:43], 0 offen lds")
        A("buffer_load_dwordx4 v4, s[40:43], s49 offen offset:1024 lds")
        for i in range(6):
            srd(A, 36, 8+2*i, 9+2*i, 512*128*2)
            A(f"buffer_load_ushort v{8+i}, v3, s[36:39], 0 offen")
        gat2 = getattr(A, "gat2", 0) and al
        A("v_and_b32 v6, 127, v0")
        A(f"v_lshlrev_b32 v6, {1 if gat2 else 4}, v6")
        A("v_lshrrev_b32 v7, 7, v0")
        A(f"v_mul_u32_u24 v7, {FCH}, v7")
        A(f"v_add_u32 v7, {FB}, v7")
        A("s_mov_b32 s46, 0xffff0000")
        for e in range(16):
            r = GA + e
            A(f"v_add_u32 v{r}, {(256*(e>>1) + (e&1)) if gat2 else e}, v6")
            A(f"v_cvt_f32_u32 v{r}, v{r}")
            A(f"v_cvt_pk_bf16_f32 v{r}, v{r}, v{r}")
            A(f"v_and_b32 v{r}, s46, v{r}")
            A(f"v_cvt_u32_f32 v{r}, v{r}")
            A(f"v_lshl_add_u32 v{r}, v{r}, 1, v7")
    if part == "conv":
        srd(A, 60, 58, 59, 256)
        A("s_lshl_b32 s47, s29, 12")
        A("s_lshl_b32 s48, s28, 11")
        A("s_add_u32 s47, s47, s48")
        A(f"s_add_u32 s47, s47, {WS_KX}")
        srd_off(A, 36, 4, 5, "s47", 2048)
        A(f"s_mul_i32 s49, s27, {KCH}")
        A("s_add_u32 s49, s49, s48")
        A(f"s_add_u32 m0, s49, {KB+512}")
        A("v_lshlrev_b32 v4, 4, v2")
        A("s_lshl_b32 s47, s29, 12")
        A(f"s_add_u32 s47, s47, {WS_UT}")
        srd_off(A, 40, 4, 5, "s47", 4096)
        A("buffer_load_dwordx4 v4, s[36:39], 0 offen lds")
        A("buffer_load_dwordx4 v4, s[36:39], 0 offen offset:1024 lds")
        A("v_and_b32 v192, 127, v0")
        A("v_lshlrev_b32 v192, 5, v192")
        A("v_subrev_u32 v193, 8, v192")
        A("v_max_i32 v193, 0, v193")
        A(f"buffer_load_dwordx4 {v(W,4)}, v192, s[40:43], 0 offen")
        A(f"buffer_load_dwordx4 {v(W+4,4)}, v192, s[40:43], 0 offen offset:16")
        A(f"buffer_load_dwordx2 {v(W+8,2)}, v193, s[40:43], 0 offen")
        A("s_mov_b32 s46, 0xffff0000")
    if cv:
        A("v_mov_b32 v232, 0\nv_mov_b32 v233, 0\nv_mov_b32 v234, 0\nv_mov_b32 v235, 0")
        A("v_lshrrev_b32 v14, 5, v0")
        A(f"v_mul_u32_u24 v14, {KCH}, v14")
        A("v_and_b32 v15, 31, v0")
        A("v_lshlrev_b32 v15, 4, v15")
        A("v_add_u32 v14, v14, v15")
        A(f"v_add_u32 v14, {KB}, v14")
        A("v_subrev_u32 v15, 64, v0")
        A("v_lshrrev_b32 v16, 3, v15")
        A(f"v_mul_u32_u24 v16, {UCH}, v16")
        A("v_lshrrev_b32 v17, 1, v15")
        A("v_and_b32 v17, 3, v17")
        A(f"v_mul_u32_u24 v17, {CS}, v17")
        A("v_add_u32 v16, v16, v17")
        A("v_and_b32 v17, 1, v15")
        A("v_lshlrev_b32 v17, 4, v17")
        A("v_add_u32 v16, v16, v17")
        A(f"v_add_u32 v16, {UB+4096}, v16")
        A("v_cmp_gt_u32 vcc, 64, v0")
        A("s_nop 1")
        A("v_cndmask_b32 v14, v16, v14, vcc")
        A("v_cmp_gt_u32 vcc, 80, v0")
        A("s_and_saveexec_b64 s[44:45], vcc")
        pz = A.label("pz")
        A(f"s_cbranch_execz {pz}")
        A("ds_write_b128 v14, v[232:235]")
        A(f"{pz}:")
        A("s_mov_b64 exec, s[44:45]")
    if kg:
        A("v_lshrrev_b32 v14, 4, v2")
        A("v_lshlrev_b32 v15, 10, v14")
        A("v_lshrrev_b32 v16, 2, v2")
        A("v_and_b32 v16, 3, v16")
        A("v_lshlrev_b32 v16, 7, v16")
        A("v_add_u32 v15, v15, v16")
        A("v_and_b32 v16, 3, v2")
        A("v_lshlrev_b32 v16, 3, v16")
        A("v_add_u32 v15, v15, v16")
        A("s_lshl_b32 s48, s25, 5")
        A(f"s_add_u32 s48, s48, {RED}")
        A("v_add_u32 v15, s48, v15")
        A("v_and_b32 v16, 15, v2")
        A("v_lshlrev_b32 v16, 12, v16")
        A("v_lshlrev_b32 v14, 4, v14")
        A("v_add_u32 v16, v16, v14")
        A("s_lshl_b32 s47, s35, 18")
        A("s_lshl_b32 s48, s25, 16")
        A("s_add_u32 s47, s47, s48")
        A("s_lshl_b32 s48, s34, 7")
        A("s_add_u32 s47, s47, s48")
        A(f"s_add_u32 s47, s47, {WS_UT}")
        srd_off(A, 40, 4, 5, "s47", 16*4096)
        srd(A, 60, 58, 59, 256)
        A("s_waitcnt vmcnt(6)")
        A("s_barrier")
        for hf in range(2):
            for k in range(2):
                A(f"ds_read_b64_tr_b16 {v(184+hf*4+k*2,2)}, v15 offset:{hf*4096 + k*512}")
        A("s_waitcnt lgkmcnt(0)")
        for hf in range(2):
            A(f"buffer_store_dwordx4 {v(184+hf*4,4)}, v16, s[40:43], 0 offen offset:{hf*64}" + (" sc1" if al else getattr(A, "hst", "")))
        A("s_waitcnt lgkmcnt(0)")
        A("s_lshl_b32 s47, s27, 4")
        A("s_lshr_b32 s32, s32, s47")
        A("s_lshl_b32 s32, s32, 16")
        A("s_lshr_b32 s33, s33, s47")
        A("s_lshl_b32 s33, s33, 16")
        A("v_mov_b32 v14, s32")
        A(f"v_mul_f32 v14, 0x{LOG2E:x}, v14")
        A("v_exp_f32 v14, v14")
        A("s_nop 0")
        A("v_cvt_pk_bf16_f32 v14, v14, v14")
        A("v_and_b32 v14, s46, v14")
        A("s_waitcnt vmcnt(2)")
        stamp(A, 3)
        for i in range(6): A(f"v_lshlrev_b32 v{8+i}, 16, v{8+i}")
        A("v_mul_f32 v20, v14, v8")
        A("v_mul_f32 v21, v14, v9")
        A(f"v_mul_f32 v20, 0x{LOG2E:x}, v20")
        A(f"v_mul_f32 v21, 0x{INV2PI:x}, v21")
        A("v_mul_f32 v10, v14, v10")
        A("v_mul_f32 v11, v14, v11")
        cmul(A, 22, 23, 12, 13, 10, 11, 16)
        A("s_mov_b32 s48, 0x44000000")
        A("s_mov_b32 s49, 0x45000000")
        cexp(A, 24, 25, 20, 21, "s48", 16)
        cexp(A, 26, 27, 20, 21, "4.0", 16)
        cexp(A, 28, 29, 20, 21, "s49", 16)
        A("v_mul_f32 v28, v28, v22")
        A("v_fma_f32 v28, -v29, v23, v28")
        A("s_lshl_b32 s50, s27, 12")
        A("s_lshl_b32 s51, s28, 11")
        A("s_add_u32 s50, s50, s51")
        A(f"s_add_u32 s50, s50, {PT}")
        A("v_lshlrev_b32 v15, 5, v2")
        A("v_add_u32 v15, s50, v15")
        A("ds_write_b128 v15, v[20:23]")
        A("ds_write_b128 v15, v[24:27] offset:16")
        for sh in (1, 2, 4, 8):
            A("s_nop 1")
            A(f"v_add_f32_dpp v28, v28, v28 row_shr:{sh} row_mask:0xf bank_mask:0xf bound_ctrl:0")
        A("s_nop 1")
        A("v_add_f32_dpp v28, v28, v28 row_bcast:15 row_mask:0xa bank_mask:0xf")
        A("s_nop 1")
        A("v_add_f32_dpp v28, v28, v28 row_bcast:31 row_mask:0xc bank_mask:0xf")
        A("s_lshl_b32 s51, s25, 2")
        A(f"s_add_u32 s51, s51, {F2K}")
        A("v_mov_b32 v29, s51")
        A("s_mov_b64 s[44:45], exec")
        A("s_mov_b32 exec_lo, 0")
        A("s_mov_b32 exec_hi, 0x80000000")
        A("ds_write_b32 v29, v28")
        A("s_mov_b64 exec, s[44:45]")
        A("v_and_b32 v16, 15, v2")
        A("v_lshrrev_b32 v17, 4, v2")
        A("v_lshrrev_b32 v18, 2, v16")
        A("v_lshlrev_b32 v18, 3, v18")
        A("v_and_b32 v19, 3, v16")
        A("v_add_u32 v18, v18, v19")
        A("v_cvt_f32_u32 v18, v18")
        A("v_lshlrev_b32 v19, 5, v16")
        A("v_cvt_f32_u32 v19, v19")
        A("v_lshlrev_b32 v15, 7, v17")
        A("v_add_u32 v15, s50, v15")
        FA = 96
        for i in range(32): A(f"v_mov_b32 v{FA+i}, 0")
        PR = 32
        YA = 64
        XB = 72
        A("s_waitcnt lgkmcnt(0)")
        pk = getattr(A, "pk", 0)
        TY, TP, TE, TF, TT = 128, 136, 144, 160, 176
        def cmul4(dst, a, b):
            if pk:
                for m in range(4):
                    A(f"v_pk_mul_f32 {v(TT+2*m,2)}, {v(a(m),2)}, {v(b(m),2)} op_sel:[1,1] op_sel_hi:[1,0]")
                for m in range(4):
                    A(f"v_pk_fma_f32 {v(dst(m),2)}, {v(a(m),2)}, {v(b(m),2)}, {v(TT+2*m,2)} op_sel:[0,0,0] op_sel_hi:[0,1,1] neg_lo:[0,0,1]")
            else:
                for m in range(4):
                    A(f"v_mul_f32 v{TT+2*m}, v{a(m)+1}, v{b(m)+1}")
                    A(f"v_mul_f32 v{TT+2*m+1}, v{a(m)+1}, v{b(m)}")
                for m in range(4):
                    A(f"v_fma_f32 v{dst(m)}, v{a(m)}, v{b(m)}, -v{TT+2*m}")
                    A(f"v_fma_f32 v{dst(m)+1}, v{a(m)}, v{b(m)+1}, v{TT+2*m+1}")
        kloop = getattr(A, "kloop", 1)
        def rd_lo():
            for m in range(4): A(f"ds_read_b128 {v(PR+8*m,4)}, v15 offset:{m*32}")
        def rd_hi():
            for m in range(4): A(f"ds_read_b128 {v(PR+8*m+4,4)}, v15 offset:{m*32 + 16}")
        rd_lo(); rd_hi()
        A("s_and_b32 s48, s24, 7")
        for l in cnt_off("s47", "s48", CB_UT, "s49"): A(l)
        A("v_mov_b32 v192, s47")
        A("s_mov_b32 s47, 0")
        kl = A.label("kgen")
        if kloop: A(f"{kl}:")
        for ks in range(1 if kloop else 4):
            def signal():
                if not getattr(A, "mst", 0): stamp(A, 11)
                A("s_waitcnt vmcnt(0)")
                if not getattr(A, "mst", 0): stamp(A, 10)
                A("s_barrier")
                sk = A.label("sig")
                A("s_cmp_lg_u32 s25, 0")
                A(f"s_cbranch_scc1 {sk}")
                for l in cnt_off("s48", "s35", CB_UT, "s49"): A(l)
                A("v_mov_b32 v194, s48")
                A("v_mov_b32 v195, 1")
                A("s_mov_b64 s[44:45], exec")
                A("s_mov_b64 exec, 1")
                A("buffer_atomic_add v195, v194, s[60:63], 0 offen sc1")
                A("s_mov_b64 exec, s[44:45]")
                A(f"{sk}:")
            if not al: pass
            elif kloop:
                skp = A.label("nosig")
                A("s_cmp_lg_u32 s47, 1")
                A(f"s_cbranch_scc1 {skp}")
                signal()
                A(f"{skp}:")
            elif ks == 1: signal()
            if not al: pass
            elif kloop:
                skp = A.label("nopoll")
                A("s_cmp_lg_u32 s47, 3")
                A(f"s_cbranch_scc1 {skp}")
                A("buffer_load_dword v193, v192, s[60:63], 0 offen sc1")
                A(f"{skp}:")
            elif ks == 3:
                A("buffer_load_dword v193, v192, s[60:63], 0 offen sc1")
            A("v_add_u32 v15, 512, v15")
            A("s_waitcnt lgkmcnt(4)")
            P = lambda m: PR + 8*m
            for m in range(4):
                if pk:
                    A(f"v_pk_mul_f32 {v(TE+2*m,2)}, v[18:19], {v(P(m),2)} op_sel:[0,0] op_sel_hi:[0,1]")
                    A(f"v_pk_mul_f32 {v(TF+2*m,2)}, v[18:19], {v(P(m),2)} op_sel:[1,0] op_sel_hi:[1,1]")
                else:
                    A(f"v_mul_f32 v{TE+2*m}, v18, v{P(m)}")
                    A(f"v_mul_f32 v{TE+2*m+1}, v18, v{P(m)+1}")
                    A(f"v_mul_f32 v{TF+2*m}, v19, v{P(m)}")
                    A(f"v_mul_f32 v{TF+2*m+1}, v19, v{P(m)+1}")
            for T in (TE, TF):
                for m in range(4): A(f"v_fract_f32 v{T+2*m+1}, v{T+2*m+1}")
            for T, D in ((TF, TP), (TE, TY)):
                for m in range(4):
                    A(f"v_exp_f32 v{T+2*m}, v{T+2*m}")
                    A(f"v_cos_f32 v{D+2*m}, v{T+2*m+1}")
                    A(f"v_sin_f32 v{D+2*m+1}, v{T+2*m+1}")
            for T, D in ((TF, TP), (TE, TY)):
                for m in range(4):
                    if pk:
                        A(f"v_pk_mul_f32 {v(D+2*m,2)}, {v(D+2*m,2)}, {v(T+2*m,2)} op_sel:[0,0] op_sel_hi:[1,0]")
                    else:
                        A(f"v_mul_f32 v{D+2*m}, v{D+2*m}, v{T+2*m}")
                        A(f"v_mul_f32 v{D+2*m+1}, v{D+2*m+1}, v{T+2*m}")
            cmul4(lambda m: TF+2*m, lambda m: TP+2*m, lambda m: P(m)+2)
            rd_lo()
            A("s_waitcnt lgkmcnt(4)")
            for m in range(4): A(f"v_cvt_pk_bf16_f32 v{YA+m}, v{TY+2*m}, v{TY+2*m+1}")
            cmul4(lambda m: TE+2*m, lambda m: TY+2*m, lambda m: P(m)+6)
            cur, oth = TF, TP
            for m in range(4): A(f"v_cvt_pk_bf16_f32 v{YA+4+m}, v{TE+2*m}, v{TE+2*m+1}")
            for r in range(4):
                for m in range(4): A(f"v_cvt_pk_bf16_f32 v{XB+4*r+m}, v{cur+2*m}, -v{cur+2*m+1}")
                if r < 3:
                    cmul4(lambda m: oth+2*m, lambda m: cur+2*m, lambda m: P(m)+4)
                    cur, oth = oth, cur
                if r == 2: rd_hi()
            A("s_nop 1")
            for c in range(2):
                for r in range(4):
                    acc = FA + (c*4+r)*4
                    A(f"v_mfma_f32_16x16x32_bf16 {v(acc,4)}, {v(YA+4*c,4)}, {v(XB+4*r,4)}, {v(acc,4)}")
        if kloop:
            A("s_add_u32 s47, s47, 1")
            A("s_cmp_lt_u32 s47, 4")
            A(f"s_cbranch_scc1 {kl}")
    stamp(A, 4)
    if al:
        if not getattr(A, "mst", 0): stamp(A, 12)
        pl = A.label("poll"); pd = A.label("polled")
        A("s_mov_b32 s53, 0")
        A(f"{pl}:")
        A("s_waitcnt vmcnt(0)")
        A("v_readfirstlane_b32 s47, v193")
        A("s_cmp_ge_u32 s47, 32")
        A(f"s_cbranch_scc1 {pd}")
        A("s_add_u32 s53, s53, 1")
        A("s_cmp_ge_u32 s53, 0x40000")
        A(f"s_cbranch_scc1 {pd}")
        A("s_sleep 8")
        A("buffer_load_dword v193, v192, s[60:63], 0 offen sc1")
        A(f"s_branch {pl}")
        A(f"{pd}:")
        stamp(A, 2)
        A("s_lshl_b32 s47, s29, 12")
        A(f"s_add_u32 s47, s47, {WS_UT}")
        srd_off(A, 40, 4, 5, "s47", 4096)
        A("v_and_b32 v192, 127, v0")
        A("v_lshlrev_b32 v192, 5, v192")
        A("v_subrev_u32 v193, 8, v192")
        A("v_max_i32 v193, 0, v193")
        A(f"buffer_load_dwordx4 {v(W,4)}, v192, s[40:43], 0 offen sc1")
        A(f"buffer_load_dwordx4 {v(W+4,4)}, v192, s[40:43], 0 offen offset:16 sc1")
        A(f"buffer_load_dwordx2 {v(W+8,2)}, v193, s[40:43], 0 offen sc1")
    if kg:
        A("s_nop 7")
        A("v_lshlrev_b32 v14, 4, v2")
        A("s_lshl_b32 s54, s25, 12")
        A(f"s_add_u32 s54, s54, {RED}")
        A("v_add_u32 v15, s54, v14")
        A("s_xor_b32 s55, s25, 1")
        A("s_lshl_b32 s55, s55, 12")
        A(f"s_add_u32 s55, s55, {RED}")
        A("v_add_u32 v16, s55, v14")
        h1 = A.label("h1"); hd = A.label("hd")
        A("s_cmp_eq_u32 s28, 1")
        A(f"s_cbranch_scc1 {h1}")
        for c in range(2):
            for rr in range(2):
                A(f"ds_write_b128 v15, {v(FA+(c*4+2+rr)*4,4)} offset:{(c*2+rr)*1024}")
                if not getattr(A, "nomov", 0):
                    for k in range(4): A(f"v_mov_b32 v{64+(c*2+rr)*4+k}, v{FA+(c*4+rr)*4+k}")
        A(f"s_branch {hd}")
        A(f"{h1}:")
        for c in range(2):
            for rr in range(2):
                A(f"ds_write_b128 v15, {v(FA+(c*4+rr)*4,4)} offset:{(c*2+rr)*1024}")
                if not getattr(A, "nomov", 0):
                    for k in range(4): A(f"v_mov_b32 v{64+(c*2+rr)*4+k}, v{FA+(c*4+2+rr)*4+k}")
        A(f"{hd}:")
        A("s_waitcnt lgkmcnt(0)")
        A("s_barrier")
        for t in range(4): A(f"ds_read_b128 {v(80+4*t,4)}, v16 offset:{t*1024}")
        A("s_lshl_b32 s51, s27, 3")
        A(f"s_add_u32 s51, s51, {F2K}")
        A("v_mov_b32 v29, s51")
        A("ds_read_b64 v[30:31], v29")
        A("s_waitcnt lgkmcnt(0)")
        if getattr(A, "nomov", 0):
            h2 = A.label("fh2"); he = A.label("fhe")
            A("s_cmp_eq_u32 s28, 1")
            A(f"s_cbranch_scc1 {h2}")
            for hs, lab in ((0, None), (2, h2)):
                if lab: A(f"{lab}:")
                for c in range(2):
                    for rr in range(2):
                        for k in range(4): A(f"v_add_f32 v{64+(c*2+rr)*4+k}, v{FA+(c*4+hs+rr)*4+k}, v{80+(c*2+rr)*4+k}")
                if not lab: A(f"s_branch {he}")
            A(f"{he}:")
        else:
            for i in range(16): A(f"v_add_f32 v{64+i}, v{64+i}, v{80+i}")
        A("v_and_b32 v16, 15, v2")
        A("v_lshlrev_b32 v16, 6, v16")
        A("v_lshrrev_b32 v17, 4, v2")
        A("v_lshlrev_b32 v17, 4, v17")
        A("v_add_u32 v16, v16, v17")
        A(f"s_mul_i32 s56, s27, {FCH}")
        A("s_lshl_b32 s57, s28, 11")
        A("s_add_u32 s57, s57, s56")
        A(f"s_add_u32 s57, s57, {FB}")
        A("v_add_u32 v16, s57, v16")
        for rr in range(2):
            for c in range(2):
                t = 64 + (c*2+rr)*4
                A(f"v_cvt_pk_bf16_f32 v{32+rr*4+c*2}, v{t}, v{t+1}")
                A(f"v_cvt_pk_bf16_f32 v{32+rr*4+c*2+1}, v{t+2}, v{t+3}")
            A(f"ds_write_b128 v16, {v(32+rr*4,4)} offset:{rr*1024}")
        A("v_add_f32 v30, v30, v31")
        A("v_cvt_pk_bf16_f32 v30, v30, v30")
        A(f"s_add_u32 s56, s56, {FB+4096}")
        A("v_mov_b32 v29, s56")
        A("s_mov_b64 s[44:45], exec")
        A("s_mov_b64 exec, 1")
        A("ds_write_b16 v29, v30")
        A("s_mov_b64 exec, s[44:45]")
        if getattr(A, "uearly", 0) and al: ucopies()
        A("s_waitcnt lgkmcnt(0)")
        A("s_barrier")
        if getattr(A, "mst", 0): stamp(A, 11)
        gat2 = getattr(A, "gat2", 0) and al
        if gat2:
            def grd(e): A(f"ds_read_u16{'_d16_hi' if e % 2 else ''} v{(40 if e % 2 else 32)+e//2}, v{GA+e}")
            def gwr(k):
                A(f"v_or_b32 v{32+k}, v{32+k}, v{40+k}")
                A(f"ds_write_b32 v16, v{32+k} offset:{KB+512+512*k}")
            for e in range(12): grd(e)
            A("v_and_b32 v16, 127, v0")
            A("v_lshlrev_b32 v16, 2, v16")
            A("v_lshrrev_b32 v17, 7, v0")
            A(f"v_mul_u32_u24 v17, {KCH}, v17")
            A("v_add_u32 v16, v16, v17")
            A("s_waitcnt lgkmcnt(6)")
            for e in range(12, 16): grd(e)
            for k in range(3): gwr(k)
            A("s_waitcnt lgkmcnt(7)")
            for k in range(3, 6): gwr(k)
            A("s_waitcnt lgkmcnt(6)")
            for k in range(6, 8): gwr(k)
        else:
            for e in range(16):
                op = "ds_read_u16" if e % 2 == 0 else "ds_read_u16_d16_hi"
                A(f"{op} v{(32 if e % 2 == 0 else 40)+e//2}, v{GA+e}")
                if e == 11: A("s_waitcnt lgkmcnt(4)")
            A("v_and_b32 v16, 127, v0")
            A("v_lshlrev_b32 v16, 5, v16")
            A("v_lshrrev_b32 v17, 7, v0")
            A(f"v_mul_u32_u24 v17, {KCH}, v17")
            A("v_add_u32 v16, v16, v17")
            A("s_waitcnt lgkmcnt(0)")
            for k in range(8): A(f"v_or_b32 v{32+k}, v{32+k}, v{40+k}")
    if al and not gat2:
        A(f"ds_write_b128 v16, v[32:35] offset:{KB+512}")
        A(f"ds_write_b128 v16, v[36:39] offset:{KB+512+16}")
    if part == "kgen":
        A("s_lshl_b32 s47, s26, 12")
        A(f"s_add_u32 s47, s47, {WS_KX}")
        srd_off(A, 36, 4, 5, "s47", 8192)
        A("v_lshlrev_b32 v16, 5, v0")
        A("buffer_store_dwordx4 v[32:35], v16, s[36:39], 0 offen" + getattr(A, "hst", ""))
        A("buffer_store_dwordx4 v[36:39], v16, s[36:39], 0 offen offset:16" + getattr(A, "hst", ""))
    if part == "conv":
        A("s_waitcnt lgkmcnt(0)")
        A("s_lshl_b32 s47, s27, 4")
        A("s_lshr_b32 s33, s33, s47")
        A("s_lshl_b32 s33, s33, 16")
        A("s_lshl_b32 s54, s25, 12")
        A(f"s_add_u32 s54, s54, {RED}")
        A("s_xor_b32 s55, s25, 1")
        A("s_lshl_b32 s55, s55, 12")
        A(f"s_add_u32 s55, s55, {RED}")
    if cv:
        if not (getattr(A, "uearly", 0) and al): ucopies()
        if getattr(A, "cpro", 0) and al: conv_addr()
        A("s_waitcnt lgkmcnt(0)")
        A("s_barrier")
        stamp(A, 5)
        if getattr(A, "dump", False):
            dl = A.label("nodump")
            A("s_cmp_lg_u32 s24, 0")
            A(f"s_cbranch_scc1 {dl}")
            srd_off(A, 36, 4, 5, 0x2000000, 81920)
            A("v_lshlrev_b32 v14, 4, v0")
            for k in range(20):
                A(f"ds_read_b128 v[32:35], v14 offset:{k*4096}" if k < 16 else f"ds_read_b128 v[32:35], v13 offset:{(k-16)*4096}")
                if k == 15: A("v_add_u32 v13, 65536, v14")
                A("s_waitcnt lgkmcnt(0)")
                A(f"s_mov_b32 s58, {k*4096}")
                A("buffer_store_dwordx4 v[32:35], v14, s[36:39], s58 offen")
                A("s_waitcnt vmcnt(0)")
            A(f"{dl}:")
    if kg:
        if (getattr(A, "fused", 0) or getattr(A, "kb2", 0)) and getattr(A, "w2pf", 1):
            A(f"s_load_dwordx2 s[50:51], s[0:1], {KA['w2']}")
            A("s_lshr_b32 s48, s24, 3")
            A("s_mul_i32 s48, s48, 448")
            A("s_mul_i32 s49, s25, 112")
            A("s_add_u32 s48, s48, s49")
            A("s_lshl_b32 s48, s48, 7")
            A("v_min_u32 v196, 55, v2")
            A("v_lshlrev_b32 v196, 7, v196")
            A("s_waitcnt lgkmcnt(0)")
            srd(A, 36, 50, 51, 1792*1024)
            A("buffer_load_dword v197, v196, s[36:39], s48 offen")
            A("s_add_u32 s48, s48, 7168")
            A("buffer_load_dword v198, v196, s[36:39], s48 offen")
    if part == 'kgen':
        stamp(A, 7)
        A(f"s_branch {endlabel}")
        return
    if not (getattr(A, "cpro", 0) and al): conv_addr()
    CA = 32
    cpro = getattr(A, "cpro", 0)
    if not cpro:
        for i in range(32): A(f"v_mov_b32 v{CA+i}, 0")
    FS = 64
    def creads(rp, fs):
        b = FS + fs*64
        for sg in range(8):
            o = 4032 - 512*sg - 64*rp
            A(f"ds_read_b64 {v(b+4*sg,2)}, v19 offset:{o}")
            A(f"ds_read_b64 {v(b+4*sg+2,2)}, v19 offset:{o+8}")
            A(f"ds_read_b128 {v(b+32+4*sg,4)}, v18 offset:{192 + 512*sg - 64*rp}")
    def cmf(fs):
        b = FS + fs*64
        pairs = sorted([(sg, q) for q in range(8) for sg in range(q+1)], key=lambda p: (max(p[0], p[1]-p[0]), p[1]))
        return pairs, b
    def cread_list(rp, fs):
        b = FS + fs*64
        L = []
        for sg in range(8):
            o = 4032 - 512*sg - 64*rp
            L.append(f"ds_read_b64 {v(b+4*sg,2)}, v19 offset:{o}")
            L.append(f"ds_read_b64 {v(b+4*sg+2,2)}, v19 offset:{o+8}")
            L.append(f"ds_read_b128 {v(b+32+4*sg,4)}, v18 offset:{192 + 512*sg - 64*rp}")
        return L
    cpipe = getattr(A, "cpipe", 0)
    creads(0, 0)
    for rp in range(4):
        fs = rp % 2
        nxt = []
        if cpipe:
            pairs, b = cmf(fs)
            nxt = cread_list(rp+1, 1-fs) if rp + 1 < 4 else []
            if rp > 0: A("s_waitcnt lgkmcnt(0)")
        else:
            if rp + 1 < 4:
                creads(rp+1, 1-fs)
                A("s_waitcnt lgkmcnt(15)")
            pairs, b = cmf(fs)
            if rp + 1 >= 4: A("s_waitcnt lgkmcnt(0)")
        seen = set()
        for n, (sg, q) in enumerate(pairs):
            cin = v(CA+4*q,4)
            if cpro and rp == 0 and q not in seen: cin = "0"
            seen.add(q)
            if cpipe and rp == 0 and n == 0: A("s_waitcnt lgkmcnt(0)")
            A(f"v_mfma_f32_16x16x32_bf16 {v(CA+4*q,4)}, {v(b+4*sg,4)}, {v(b+32+4*(q-sg),4)}, {cin}")
            if cpipe and n < len(nxt): A(nxt[n])
    stamp(A, 6)
    A("s_nop 7")
    A("v_lshlrev_b32 v14, 4, v2")
    A("v_add_u32 v15, s54, v14")
    A("v_add_u32 v16, s55, v14")
    h1 = A.label("h1"); hd = A.label("hd")
    A("s_cmp_eq_u32 s28, 1")
    A(f"s_cbranch_scc1 {h1}")
    nomov = getattr(A, "nomov", 0)
    for t in range(4):
        A(f"ds_write_b128 v15, {v(CA+16+4*t,4)} offset:{t*1024}")
        if not nomov:
            for k in range(4): A(f"v_mov_b32 v{64+4*t+k}, v{CA+4*t+k}")
    A(f"s_branch {hd}")
    A(f"{h1}:")
    for t in range(4):
        A(f"ds_write_b128 v15, {v(CA+4*t,4)} offset:{t*1024}")
        if not nomov:
            for k in range(4): A(f"v_mov_b32 v{64+4*t+k}, v{CA+16+4*t+k}")
    A(f"{hd}:")
    A("s_waitcnt lgkmcnt(0)")
    A("s_barrier")
    for t in range(4): A(f"ds_read_b128 {v(80+4*t,4)}, v16 offset:{t*1024}")
    A("v_and_b32 v16, 15, v2")
    A("v_lshrrev_b32 v17, 4, v2")
    A("v_lshlrev_b32 v20, 5, v16")
    A("v_lshlrev_b32 v21, 3, v17")
    A("v_add_u32 v20, v20, v21")
    A(f"s_mul_i32 s56, s27, {UCH}")
    A("s_lshl_b32 s57, s28, 11")
    A("s_sub_u32 s56, s56, s57")
    A(f"s_add_u32 s56, s56, {UB + 4088 - 1536}")
    A("v_sub_u32 v21, s56, v20")
    for t in range(4): A(f"ds_read_b64 {v(100+2*t,2)}, v21 offset:{1536 - 512*t}")
    A("s_waitcnt lgkmcnt(0)")
    A("v_mov_b32 v22, s33")
    if nomov:
        h2 = A.label("h2"); he = A.label("he")
        A("s_cmp_eq_u32 s28, 1")
        A(f"s_cbranch_scc1 {h2}")
        for i in range(16): A(f"v_add_f32 v{64+i}, v{CA+i}, v{80+i}")
        A(f"s_branch {he}")
        A(f"{h2}:")
        for i in range(16): A(f"v_add_f32 v{64+i}, v{CA+16+i}, v{80+i}")
        A(f"{he}:")
    for t in range(4):
        if not nomov:
            for k in range(4): A(f"v_add_f32 v{64+4*t+k}, v{64+4*t+k}, v{80+4*t+k}")
        y = 64 + 4*t
        cvz = getattr(A, "cvz", 0)
        if cvz:
            for k in range(4): A(f"v_cvt_pk_bf16_f32 v{y+k}, 0, v{y+k}")
        else:
            A(f"v_cvt_pk_bf16_f32 v24, v{y}, v{y+1}")
            A(f"v_cvt_pk_bf16_f32 v25, v{y+2}, v{y+3}")
            A(f"v_lshlrev_b32 v{y}, 16, v24")
            A(f"v_and_b32 v{y+1}, s46, v24")
            A(f"v_lshlrev_b32 v{y+2}, 16, v25")
            A(f"v_and_b32 v{y+3}, s46, v25")
        u0, u1 = 100+2*t, 101+2*t
        A(f"v_and_b32 v26, s46, v{u1}")
        A(f"v_lshlrev_b32 v27, 16, v{u1}")
        A(f"v_and_b32 v28, s46, v{u0}")
        A(f"v_lshlrev_b32 v29, 16, v{u0}")
        for k in range(4): A(f"v_mul_f32 v{26+k}, v{26+k}, v22")
        if cvz:
            for k in range(4): A(f"v_cvt_pk_bf16_f32 v{26+k}, 0, v{26+k}")
        else:
            A("v_cvt_pk_bf16_f32 v24, v26, v27")
            A("v_cvt_pk_bf16_f32 v25, v28, v29")
            A("v_lshlrev_b32 v26, 16, v24")
            A("v_and_b32 v27, s46, v24")
            A("v_lshlrev_b32 v28, 16, v25")
            A("v_and_b32 v29, s46, v25")
        for k in range(4): A(f"v_add_f32 v{26+k}, v{26+k}, v{y+k}")
        A(f"v_cvt_pk_bf16_f32 v{112+2*t}, v26, v27")
        A(f"v_cvt_pk_bf16_f32 v{113+2*t}, v28, v29")
    A("s_lshl_b32 s56, s29, 12")
    A("s_lshl_b32 s57, s28, 11")
    A("s_add_u32 s56, s56, s57")
    A(f"s_add_u32 s56, s56, {WS_AT}")
    srd_off(A, 36, 4, 5, "s56", 2048)
    for t in range(4):
        A(f"buffer_store_dwordx2 {v(112+2*t,2)}, v20, s[36:39], 0 offen offset:{512*t}" + getattr(A, "hst", ""))
    stamp(A, 7)
    if getattr(A, "fused", 0) or part == "conv":
        sig2(A, ["s_and_b32 s48, s24, 7"] + cnt_off("s47", "s48", CB_AT, "s49"), "s25", 60, tmp=16)
    A(f"s_branch {endlabel}")
```

```python
from asmlib import *

def gen_kb(A, name="kb_kernel"):
    NSET = getattr(A, 'nset', 4)
    kernel_header(A, name)
    end = A.label("kb_end")
    A("s_cmp_ge_u32 s2, 256")
    A(f"s_cbranch_scc1 {end}")
    stamp(A, 0, real=True); stamp(A, 1)
    A(f"s_load_dwordx2 s[4:5], s[0:1], {KA['ws']}")
    A(f"s_load_dwordx2 s[6:7], s[0:1], {KA['out']}")
    A("v_lshrrev_b32 v1, 6, v0")
    A("v_and_b32 v2, 63, v0")
    A("s_and_b32 s8, s2, 7")
    A("v_readfirstlane_b32 s9, v1")
    A("s_lshr_b32 s10, s2, 3")
    A("s_and_b32 s11, s10, 3")
    A("s_lshl_b32 s8, s8, 2")
    A("s_add_u32 s8, s8, s11")
    A("s_lshr_b32 s10, s10, 2")
    A("v_lshlrev_b32 v3, 4, v2")
    A("s_mul_i32 s12, s9, 14")
    A("s_mul_i32 s13, s8, 56")
    A("s_add_u32 s13, s13, s12")
    A("s_lshl_b32 s13, s13, 12")
    A("s_mul_i32 s14, s10, 56")
    A("s_add_u32 s14, s14, s12")
    A("s_lshl_b32 s14, s14, 12")
    A(f"s_add_u32 s14, s14, {WS_W2F}")
    A("v_lshrrev_b32 v4, 3, v2")
    A("v_lshlrev_b32 v4, 12, v4")
    A("v_and_b32 v5, 7, v2")
    A("v_lshlrev_b32 v5, 4, v5")
    A("v_add_u32 v4, v4, v5")
    A("s_lshl_b32 s15, s10, 6")
    A("s_lshl_b32 s16, s9, 4")
    A("s_add_u32 s15, s15, s16")
    A("s_lshl_b32 s15, s15, 12")
    A("s_lshl_b32 s16, s8, 7")
    A("s_add_u32 s15, s15, s16")
    A(f"s_add_u32 s15, s15, {WS_AT}")
    A("v_and_b32 v5, 15, v2")
    A("v_lshlrev_b32 v6, 2, v5")
    A("s_lshl_b32 s17, s8, 8")
    A("s_lshl_b32 s18, s9, 6")
    A("s_add_u32 s17, s17, s18")
    A(f"s_add_u32 s17, s17, {WS_G}")
    A("s_waitcnt lgkmcnt(0)")
    srd_off(A, 20, 4, 5, "s13", 14*4096)
    srd_off(A, 24, 4, 5, "s14", 14*4096)
    srd_off(A, 28, 4, 5, "s15", 16*4096)
    srd_off(A, 32, 4, 5, "s17", 64)
    A("s_lshl_b32 s19, s9, 11")
    A("s_add_u32 s19, s19, 65536")
    A("s_mov_b32 m0, s19")
    A("s_mov_b32 s36, 32768")
    A("buffer_load_dwordx4 v4, s[28:31], 0 offen lds")
    A("s_add_u32 s19, s19, 1024")
    A("s_mov_b32 m0, s19")
    A("s_nop 0")
    A("buffer_load_dwordx4 v4, s[28:31], s36 offen lds")
    A("buffer_load_dword v7, v6, s[32:35], 0 offen")
    def st_addr():
        A("v_and_b32 v5, 15, v2")
        A("v_lshlrev_b32 v5, 10, v5")
        A("v_lshrrev_b32 v12, 4, v2")
        A("v_lshlrev_b32 v12, 4, v12")
        A("v_add_u32 v5, v5, v12")
        A("s_lshl_b32 s42, s8, 16")
        A("s_lshl_b32 s43, s9, 14")
        A("s_add_u32 s42, s42, s43")
        A("s_lshl_b32 s43, s10, 7")
        A("s_add_u32 s42, s42, s43")
        srd(A, 44, 6, 7, 2048*1024)
    SET0 = 8
    def setreg(k, i): return SET0 + (k % NSET) * 32 + i * 4
    def issue_list(step):
        L = []
        for i in range(4):
            L.append(f"buffer_load_dwordx4 {v(setreg(step, i),4)}, v3, s[24:27], s{48+step%2} offen offset:{i*1024}")
            L.append(f"buffer_load_dwordx4 {v(setreg(step, 4+i),4)}, v3, s[20:23], s{48+step%2} offen offset:{i*1024}")
        if getattr(A, "brot", None) is not None:
            return [f"s_mov_b32 s{48+step%2}, s50", "s_add_u32 s50, s50, 4096", f"s_cmp_ge_u32 s50, {14*4096}", "s_cselect_b32 s50, 0, s50"], L
        return [f"s_mov_b32 s{48+step%2}, {step*4096}"], L
    if getattr(A, "brot", None) is not None:
        md, ml = divmod(A.brot, 10)
        A(f"s_mul_i32 s50, s10, {md}")
        A(f"s_mul_i32 s51, s11, {ml}")
        A("s_add_u32 s50, s50, s51")
        for _ in range((7*md + 3*ml) // 14):
            A("s_sub_u32 s51, s50, 14")
            A("s_cmp_ge_u32 s50, 14")
            A("s_cselect_b32 s50, s51, s50")
        A("s_lshl_b32 s50, s50, 12")
    for st in range(NSET-1):
        su, L = issue_list(st)
        for l in su + L: A(l)
    bpre = getattr(A, "bpre", 0)
    if bpre:
        assert NSET == 3
        A("v_lshrrev_b32 v129, 4, v2")
        A("v_lshlrev_b32 v128, 10, v129")
        A("v_lshrrev_b32 v129, 2, v2")
        A("v_and_b32 v129, 3, v129")
        A("v_lshlrev_b32 v129, 7, v129")
        A("v_add_u32 v128, v128, v129")
        A("v_and_b32 v129, 3, v2")
        A("v_lshlrev_b32 v129, 3, v129")
        A("v_add_u32 v128, v128, v129")
        A("s_lshl_b32 s38, s9, 5")
        A("s_add_u32 s38, s38, 65536")
        A("v_add_u32 v128, s38, v128")
        A("s_mov_b32 s40, 0xffff0000")
    for i in range(64): A(f"v_accvgpr_write_b32 a{i}, 0")
    for st in range(14):
        last = min(st + NSET - 2, 13)
        A(f"s_waitcnt vmcnt({8*(last-st)})")
        if st == 0: stamp(A, 2)
        if st == 7: stamp(A, 3)
        nx = st + NSET - 1
        su, L = issue_list(nx) if nx < 14 else ([], [])
        for l in su: A(l)
        X = []
        if bpre and st == 3:
            A("s_barrier")
            for dt in range(4):
                A(f"ds_read_b64_tr_b16 {v(120+dt*2,2)}, v128 offset:{(dt>>1)*4096 + (dt&1)*512}")
        if bpre and st == 5:
            A("s_waitcnt lgkmcnt(0)")
            for p in range(8):
                X += [f"v_lshlrev_b32 v{104+2*p}, 16, v{120+p}", f"v_and_b32 v{105+2*p}, s40, v{120+p}"]
            for p in range(16): X.append(f"v_mul_f32 v{104+p}, v7, v{104+p}")
            for p in range(16): X.append(f"v_cvt_pk_bf16_f32 v{104+p}, 0, v{104+p}")
        k = 0
        for dt in range(4):
            for lt in range(4):
                acc = (dt*4 + lt)*4
                A(f"v_mfma_f32_16x16x32_bf16 {a_(acc,4)}, {v(setreg(st,dt),4)}, {v(setreg(st,4+lt),4)}, {a_(acc,4)}")
                if k % 2 == 0 and L: A(L[k//2])
                for x in X[3*k:3*k+3]: A(x)
                k += 1
    stamp(A, 4)
    A("s_nop 7")
    A("s_nop 1")
    A("s_lshl_b32 s38, s9, 12")
    A("v_add_u32 v8, s38, v3")
    for lt in range(4):
        skip = A.label("skipw")
        A(f"s_cmp_eq_u32 s9, {lt}")
        A(f"s_cbranch_scc1 {skip}")
        for dt in range(4):
            acc = (dt*4 + lt)*4
            A(f"ds_write_b128 v8, {a_(acc,4)} offset:{lt*16384 + dt*1024}")
        A(f"{skip}:")
    for lt in range(4):
        skip = A.label("skipo")
        A(f"s_cmp_lg_u32 s9, {lt}")
        A(f"s_cbranch_scc1 {skip}")
        for dt in range(4):
            for r in range(4):
                A(f"v_accvgpr_read_b32 v{16+dt*4+r}, a{(dt*4+lt)*4+r}")
        A(f"{skip}:")
    if bpre: st_addr()
    A("s_waitcnt vmcnt(0) lgkmcnt(0)")
    A("s_barrier")
    A("s_lshl_b32 s38, s9, 14")
    A("v_add_u32 v8, s38, v3")
    for q in range(1, 4):
        A(f"s_add_u32 s39, s9, {q}")
        A("s_and_b32 s39, s39, 3")
        A("s_lshl_b32 s39, s39, 12")
        A(f"v_add_u32 v{8+q}, s39, v8")
    for q in range(1, 4):
        for dt in range(4):
            A(f"ds_read_b128 {v(32+(q-1)*16+dt*4,4)}, v{8+q} offset:{dt*1024}")
    if not bpre:
        A("v_lshrrev_b32 v12, 4, v2")
        A("v_lshlrev_b32 v13, 10, v12")
        A("v_lshrrev_b32 v14, 2, v2")
        A("v_and_b32 v14, 3, v14")
        A("v_lshlrev_b32 v14, 7, v14")
        A("v_add_u32 v13, v13, v14")
        A("v_and_b32 v14, 3, v2")
        A("v_lshlrev_b32 v14, 3, v14")
        A("v_add_u32 v13, v13, v14")
        A("s_lshl_b32 s38, s9, 5")
        A("s_add_u32 s38, s38, 65536")
        A("v_add_u32 v13, s38, v13")
        for dt in range(4):
            A(f"ds_read_b64_tr_b16 {v(80+dt*2,2)}, v13 offset:{(dt>>1)*4096 + (dt&1)*512}")
    if not bpre: A("s_waitcnt lgkmcnt(4)")
    for q in range(3):
        if bpre: A(f"s_waitcnt lgkmcnt({8-4*q})")
        for i in range(16):
            A(f"v_add_f32 v{16+i}, v{16+i}, v{32+q*16+i}")
    A("v_sub_f32 v8, 1.0, v7")
    A("v_cvt_pk_bf16_f32 v8, v8, v8")
    A("v_and_b32 v8, 0xffff0000, v8")
    A("s_waitcnt lgkmcnt(0)")
    A("s_mov_b32 s40, 0xffff0000")
    cvz = getattr(A, "cvz", 0)
    for p in range(8):
        b0, b1 = 16+2*p, 17+2*p
        if cvz:
            A(f"v_cvt_pk_bf16_f32 v{b0}, 0, v{b0}")
            A(f"v_cvt_pk_bf16_f32 v{b1}, 0, v{b1}")
        else:
            A(f"v_cvt_pk_bf16_f32 v9, v{b0}, v{b1}")
            A(f"v_lshlrev_b32 v{b0}, 16, v9")
            A(f"v_and_b32 v{b1}, s40, v9")
        if bpre:
            A(f"v_mul_f32 v{b0}, v8, v{b0}")
            A(f"v_mul_f32 v{b1}, v8, v{b1}")
            A(f"v_cvt_pk_bf16_f32 v{b0}, 0, v{b0}")
            A(f"v_cvt_pk_bf16_f32 v{b1}, 0, v{b1}")
            A(f"v_add_f32 v{b0}, v{104+2*p}, v{b0}")
            A(f"v_add_f32 v{b1}, v{105+2*p}, v{b1}")
            A(f"v_cvt_pk_bf16_f32 v{88+p}, v{b0}, v{b1}")
            continue
        A(f"v_lshlrev_b32 v10, 16, v{80+p}")
        A(f"v_and_b32 v11, s40, v{80+p}")
        A(f"v_mul_f32 v10, v7, v10")
        A(f"v_mul_f32 v11, v7, v11")
        A(f"v_mul_f32 v{b0}, v8, v{b0}")
        A(f"v_mul_f32 v{b1}, v8, v{b1}")
        if cvz:
            for r in (10, 11, b0, b1): A(f"v_cvt_pk_bf16_f32 v{r}, 0, v{r}")
        else:
            A(f"v_cvt_pk_bf16_f32 v9, v10, v11")
            A(f"v_cvt_pk_bf16_f32 v12, v{b0}, v{b1}")
            A(f"v_lshlrev_b32 v10, 16, v9")
            A(f"v_and_b32 v11, s40, v9")
            A(f"v_lshlrev_b32 v{b0}, 16, v12")
            A(f"v_and_b32 v{b1}, s40, v12")
        A(f"v_add_f32 v10, v10, v{b0}")
        A(f"v_add_f32 v11, v11, v{b1}")
        A(f"v_cvt_pk_bf16_f32 v{88+p}, v10, v11")
    if not bpre: st_addr()
    ost = getattr(A, "ost", "")
    A("buffer_store_dwordx4 v[88:91], v5, s[44:47], s42 offen" + ost)
    A("buffer_store_dwordx4 v[92:95], v5, s[44:47], s42 offen offset:64" + ost)
    if getattr(A, "stamps", False):
        A("s_waitcnt vmcnt(0)")
        stamp(A, 5); stamp(A, 6, real=True)
        stamp_flush(A, 7, "s4", "s5", wave_sgpr="s9", base=0x20000)
    A(f"{end}:")
    A("s_endpgm")
    return dict(name=name, vgpr=256+64, accum=256)
```

```python
from asmlib import *
from kb2 import signal as sig2, cnt_off, CB_UT, CB_AT
LOG2E = 0x3fb8aa3b
INV2PI = 0x3e22f983
UB = 512; CS = 4160; UCH = 4*CS
KB = 34048; KCH = 4608
FB = 43264; FCH = 4224
PT = 51712
RED = 59904
F2K = 76288

def cexp(A, dre, dim, alpha, beta, t, tmp):
    A(f"v_mul_f32 v{tmp}, {t}, v{alpha}")
    A(f"v_mul_f32 v{tmp+1}, {t}, v{beta}")
    A(f"v_exp_f32 v{tmp}, v{tmp}")
    A(f"v_fract_f32 v{tmp+1}, v{tmp+1}")
    A(f"v_cos_f32 v{dre}, v{tmp+1}")
    A(f"v_sin_f32 v{dim}, v{tmp+1}")
    A("s_nop 0")
    A(f"v_mul_f32 v{dre}, v{dre}, v{tmp}")
    A(f"v_mul_f32 v{dim}, v{dim}, v{tmp}")

def cmul(A, dre, dim, are, aim, bre, bim, tmp):
    A(f"v_mul_f32 v{tmp}, v{aim}, v{bim}")
    A(f"v_mul_f32 v{tmp+1}, v{aim}, v{bre}")
    A(f"v_fma_f32 v{dre}, v{are}, v{bre}, -v{tmp}")
    A(f"v_fma_f32 v{dim}, v{are}, v{bim}, v{tmp+1}")

def gen_ssm(A, endlabel, part="all"):
    kg = part in ("all", "kgen"); cv = part in ("all", "conv"); al = part == "all"
    W = 200
    GA = 216
    idbase = 0 if part == 'conv' else 256
    def ucopies():
        if getattr(A, "mst", 0): stamp(A, 10)
        A("s_waitcnt vmcnt(0)")
        if getattr(A, "mst", 0): stamp(A, 12)
        A("v_and_b32 v14, 127, v0")
        A("v_cmp_eq_u32 vcc, 0, v14")
        A("s_mov_b32 s52, 0xffff")
        A(f"v_cndmask_b32 v{W+8}, v{W+8}, 0, vcc" if False else f"v_mov_b32 v20, 0")
        A(f"v_cndmask_b32 v{W+8}, v{W+8}, v20, vcc")
        A(f"v_cndmask_b32 v{W+9}, v{W+9}, v20, vcc")
        A("v_sub_u32 v14, 127, v14")
        A("v_lshlrev_b32 v14, 5, v14")
        A(f"s_mul_i32 s53, s27, {UCH}")
        A("v_add_u32 v14, s53, v14")
        def PRG(p): return W + p if p >= 0 else W + 10 + p
        Q = 128
        for c in range(4):
            for b in range(2):
                q = Q + (c*2+b)*4
                for k in range(4):
                    j = 8*b + 7 - c - 2*k
                    if j % 2:
                        p = (j-1)//2
                        A(f"v_alignbit_b32 v{q+k}, v{PRG(p)}, v{PRG(p)}, 16")
                    else:
                        p = j//2
                        A(f"v_bfi_b32 v{q+k}, s52, v{PRG(p)}, v{PRG(p-1)}")
                A(f"ds_write_b128 v14, {v(q,4)} offset:{UB + c*CS + (1-b)*16}")
    def conv_addr():
        A("v_and_b32 v16, 15, v2")
        A("v_lshrrev_b32 v17, 4, v2")
        A("v_lshlrev_b32 v18, 5, v16")
        A("v_lshlrev_b32 v19, 4, v17")
        A("v_add_u32 v18, v18, v19")
        A(f"s_mul_i32 s56, s27, {KCH}")
        A("s_lshl_b32 s57, s28, 8")
        A("s_sub_u32 s56, s56, s57")
        A(f"s_add_u32 s56, s56, {KB+480-192}")
        A("v_add_u32 v18, s56, v18")
        A("v_and_b32 v20, 3, v16")
        A("v_sub_u32 v20, 3, v20")
        A(f"v_mul_u32_u24 v20, {CS}, v20")
        A("v_add_u32 v20, v20, v19")
        A("v_lshrrev_b32 v21, 2, v16")
        A("v_lshlrev_b32 v21, 3, v21")
        A("v_sub_u32 v20, v20, v21")
        A(f"s_mul_i32 s56, s27, {UCH}")
        A("s_sub_u32 s56, s56, s57")
        A(f"s_add_u32 s56, s56, {UB+24}")
        A("v_add_u32 v19, s56, v20")
        if getattr(A, "epre", 0):
            A("v_lshlrev_b32 v20, 5, v16")
            A("v_lshlrev_b32 v21, 3, v17")
            A("v_add_u32 v20, v20, v21")
            A(f"s_mul_i32 s56, s27, {UCH}")
            A("s_lshl_b32 s57, s28, 11")
            A("s_sub_u32 s56, s56, s57")
            A(f"s_add_u32 s56, s56, {UB + 4088 - 1536}")
            A("v_sub_u32 v21, s56, v20")
    A.c("==== SSM role ====")
    for i, n in enumerate(["ws", "u", "A_re", "A_im", "B_re", "B_im", "C_re", "C_im", "log_dt", "Dskip"]):
        A(f"s_load_dwordx2 s[{4+2*i}:{5+2*i}], s[0:1], {KA[n]}")
    A(f"s_load_dwordx2 s[58:59], s[0:1], {KA['dbg']}")
    A(f"s_load_dwordx2 s[56:57], s[0:1], {KA['w2']}")
    A("v_lshrrev_b32 v1, 6, v0")
    A("v_and_b32 v2, 63, v0")
    A(f"s_sub_u32 s24, s2, {idbase}")
    A("v_readfirstlane_b32 s25, v1")
    A("s_and_b32 s26, s24, 7")
    A("s_lshr_b32 s27, s24, 3")
    A("s_lshl_b32 s26, s26, 6")
    A("s_lshl_b32 s27, s27, 1")
    A("s_add_u32 s26, s26, s27")
    A("s_lshr_b32 s27, s25, 1")
    A("s_and_b32 s28, s25, 1")
    A("s_add_u32 s29, s26, s27")
    A("s_lshl_b32 s30, s29, 8")
    A("s_lshl_b32 s31, s28, 7")
    A("s_add_u32 s30, s30, s31")
    A("v_lshlrev_b32 v3, 1, v2")
    A("v_add_u32 v3, s30, v3")
    A("s_lshl_b32 s31, s26, 1")
    A("s_waitcnt lgkmcnt(0)")
    A("s_add_u32 s20, s20, s31\ns_addc_u32 s21, s21, 0")
    A("s_add_u32 s22, s22, s31\ns_addc_u32 s23, s23, 0")
    A("s_load_dword s32, s[20:21], 0")
    A("s_load_dword s33, s[22:23], 0")
    if kg:
        A("s_and_b32 s34, s24, 7")
        A("s_lshr_b32 s35, s24, 3")
        if getattr(A, "map47", 0):
            A("s_and_b32 s48, s34, 1")
            A("s_lshr_b32 s34, s34, 1")
            A("s_lshl_b32 s34, s34, 3")
            A("s_and_b32 s47, s35, 7")
            A("s_add_u32 s34, s34, s47")
            A("s_lshr_b32 s35, s35, 3")
            A("s_lshl_b32 s48, s48, 2")
            A("s_add_u32 s35, s35, s48")
        else:
            A("s_lshl_b32 s34, s34, 2")
            A("s_and_b32 s47, s35, 3")
            A("s_add_u32 s34, s34, s47")
            A("s_lshr_b32 s35, s35, 2")
        A("s_lshl_b32 s47, s34, 16")
        A("s_lshl_b32 s48, s25, 14")
        A("s_add_u32 s47, s47, s48")
        A("s_lshl_b32 s48, s35, 7")
        A("s_add_u32 s47, s47, s48")
        srd_off(A, 40, 6, 7, "s47", 15*1024 + 128)
        A("v_lshrrev_b32 v4, 3, v2")
        A("v_lshlrev_b32 v4, 10, v4")
        A("v_and_b32 v5, 7, v2")
        A("v_lshlrev_b32 v5, 4, v5")
        A("v_add_u32 v4, v4, v5")
        A("s_lshl_b32 s48, s25, 11")
        A(f"s_add_u32 s48, s48, {RED}")
        A("s_mov_b32 m0, s48")
        A(f"s_mov_b32 s49, {8192-1024}")
        A("buffer_load_dwordx4 v4, s[40:43], 0 offen lds")
        A("buffer_load_dwordx4 v4, s[40:43], s49 offen offset:1024 lds")
        for i in range(6):
            srd(A, 36, 8+2*i, 9+2*i, 512*128*2)
            A(f"buffer_load_ushort v{8+i}, v3, s[36:39], 0 offen")
        gat2 = getattr(A, "gat2", 0) and al
        A("v_and_b32 v6, 127, v0")
        A(f"v_lshlrev_b32 v6, {1 if gat2 else 4}, v6")
        A("v_lshrrev_b32 v7, 7, v0")
        A(f"v_mul_u32_u24 v7, {FCH}, v7")
        A(f"v_add_u32 v7, {FB}, v7")
        A("s_mov_b32 s46, 0xffff0000")
        for e in range(16):
            r = GA + e
            A(f"v_add_u32 v{r}, {(256*(e>>1) + (e&1)) if gat2 else e}, v6")
            A(f"v_cvt_f32_u32 v{r}, v{r}")
            A(f"v_cvt_pk_bf16_f32 v{r}, v{r}, v{r}")
            A(f"v_and_b32 v{r}, s46, v{r}")
            A(f"v_cvt_u32_f32 v{r}, v{r}")
            A(f"v_lshl_add_u32 v{r}, v{r}, 1, v7")
    if part == "conv":
        srd(A, 60, 58, 59, 256)
        A("s_lshl_b32 s47, s29, 12")
        A("s_lshl_b32 s48, s28, 11")
        A("s_add_u32 s47, s47, s48")
        A(f"s_add_u32 s47, s47, {WS_KX}")
        srd_off(A, 36, 4, 5, "s47", 2048)
        A(f"s_mul_i32 s49, s27, {KCH}")
        A("s_add_u32 s49, s49, s48")
        A(f"s_add_u32 m0, s49, {KB+512}")
        A("v_lshlrev_b32 v4, 4, v2")
        A("s_lshl_b32 s47, s29, 12")
        A(f"s_add_u32 s47, s47, {WS_UT}")
        srd_off(A, 40, 4, 5, "s47", 4096)
        A("buffer_load_dwordx4 v4, s[36:39], 0 offen lds")
        A("buffer_load_dwordx4 v4, s[36:39], 0 offen offset:1024 lds")
        A("v_and_b32 v192, 127, v0")
        A("v_lshlrev_b32 v192, 5, v192")
        A("v_subrev_u32 v193, 8, v192")
        A("v_max_i32 v193, 0, v193")
        A(f"buffer_load_dwordx4 {v(W,4)}, v192, s[40:43], 0 offen")
        A(f"buffer_load_dwordx4 {v(W+4,4)}, v192, s[40:43], 0 offen offset:16")
        A(f"buffer_load_dwordx2 {v(W+8,2)}, v193, s[40:43], 0 offen")
        A("s_mov_b32 s46, 0xffff0000")
    if cv:
        A("v_mov_b32 v232, 0\nv_mov_b32 v233, 0\nv_mov_b32 v234, 0\nv_mov_b32 v235, 0")
        A("v_lshrrev_b32 v14, 5, v0")
        A(f"v_mul_u32_u24 v14, {KCH}, v14")
        A("v_and_b32 v15, 31, v0")
        A("v_lshlrev_b32 v15, 4, v15")
        A("v_add_u32 v14, v14, v15")
        A(f"v_add_u32 v14, {KB}, v14")
        A("v_subrev_u32 v15, 64, v0")
        A("v_lshrrev_b32 v16, 3, v15")
        A(f"v_mul_u32_u24 v16, {UCH}, v16")
        A("v_lshrrev_b32 v17, 1, v15")
        A("v_and_b32 v17, 3, v17")
        A(f"v_mul_u32_u24 v17, {CS}, v17")
        A("v_add_u32 v16, v16, v17")
        A("v_and_b32 v17, 1, v15")
        A("v_lshlrev_b32 v17, 4, v17")
        A("v_add_u32 v16, v16, v17")
        A(f"v_add_u32 v16, {UB+4096}, v16")
        A("v_cmp_gt_u32 vcc, 64, v0")
        A("s_nop 1")
        A("v_cndmask_b32 v14, v16, v14, vcc")
        A("v_cmp_gt_u32 vcc, 80, v0")
        A("s_and_saveexec_b64 s[44:45], vcc")
        pz = A.label("pz")
        A(f"s_cbranch_execz {pz}")
        A("ds_write_b128 v14, v[232:235]")
        A(f"{pz}:")
        A("s_mov_b64 exec, s[44:45]")
    if kg:
        A("v_lshrrev_b32 v14, 4, v2")
        A("v_lshlrev_b32 v15, 10, v14")
        A("v_lshrrev_b32 v16, 2, v2")
        A("v_and_b32 v16, 3, v16")
        A("v_lshlrev_b32 v16, 7, v16")
        A("v_add_u32 v15, v15, v16")
        A("v_and_b32 v16, 3, v2")
        A("v_lshlrev_b32 v16, 3, v16")
        A("v_add_u32 v15, v15, v16")
        A("s_lshl_b32 s48, s25, 5")
        A(f"s_add_u32 s48, s48, {RED}")
        A("v_add_u32 v15, s48, v15")
        A("v_and_b32 v16, 15, v2")
        A("v_lshlrev_b32 v16, 12, v16")
        A("v_lshlrev_b32 v14, 4, v14")
        A("v_add_u32 v16, v16, v14")
        A("s_lshl_b32 s47, s35, 18")
        A("s_lshl_b32 s48, s25, 16")
        A("s_add_u32 s47, s47, s48")
        A("s_lshl_b32 s48, s34, 7")
        A("s_add_u32 s47, s47, s48")
        A(f"s_add_u32 s47, s47, {WS_UT}")
        srd_off(A, 40, 4, 5, "s47", 16*4096)
        srd(A, 60, 58, 59, 256)
        A("s_waitcnt vmcnt(6)")
        A("s_barrier")
        for hf in range(2):
            for k in range(2):
                A(f"ds_read_b64_tr_b16 {v(184+hf*4+k*2,2)}, v15 offset:{hf*4096 + k*512}")
        A("s_waitcnt lgkmcnt(0)")
        for hf in range(2):
            A(f"buffer_store_dwordx4 {v(184+hf*4,4)}, v16, s[40:43], 0 offen offset:{hf*64}" + (" sc1" if al else getattr(A, "hst", "")))
        A("s_waitcnt lgkmcnt(0)")
        A("s_lshl_b32 s47, s27, 4")
        A("s_lshr_b32 s32, s32, s47")
        A("s_lshl_b32 s32, s32, 16")
        A("s_lshr_b32 s33, s33, s47")
        A("s_lshl_b32 s33, s33, 16")
        A("v_mov_b32 v14, s32")
        A(f"v_mul_f32 v14, 0x{LOG2E:x}, v14")
        A("v_exp_f32 v14, v14")
        A("s_nop 0")
        A("v_cvt_pk_bf16_f32 v14, v14, v14")
        A("v_and_b32 v14, s46, v14")
        A("s_waitcnt vmcnt(2)")
        stamp(A, 3)
        for i in range(6): A(f"v_lshlrev_b32 v{8+i}, 16, v{8+i}")
        A("v_mul_f32 v20, v14, v8")
        A("v_mul_f32 v21, v14, v9")
        A(f"v_mul_f32 v20, 0x{LOG2E:x}, v20")
        A(f"v_mul_f32 v21, 0x{INV2PI:x}, v21")
        A("v_mul_f32 v10, v14, v10")
        A("v_mul_f32 v11, v14, v11")
        cmul(A, 22, 23, 12, 13, 10, 11, 16)
        A("s_mov_b32 s48, 0x44000000")
        A("s_mov_b32 s49, 0x45000000")
        cexp(A, 24, 25, 20, 21, "s48", 16)
        cexp(A, 26, 27, 20, 21, "4.0", 16)
        cexp(A, 28, 29, 20, 21, "s49", 16)
        A("v_mul_f32 v28, v28, v22")
        A("v_fma_f32 v28, -v29, v23, v28")
        A("s_lshl_b32 s50, s27, 12")
        A("s_lshl_b32 s51, s28, 11")
        A("s_add_u32 s50, s50, s51")
        A(f"s_add_u32 s50, s50, {PT}")
        A("v_lshlrev_b32 v15, 5, v2")
        A("v_add_u32 v15, s50, v15")
        A("ds_write_b128 v15, v[20:23]")
        A("ds_write_b128 v15, v[24:27] offset:16")
        for sh in (1, 2, 4, 8):
            A("s_nop 1")
            A(f"v_add_f32_dpp v28, v28, v28 row_shr:{sh} row_mask:0xf bank_mask:0xf bound_ctrl:0")
        A("s_nop 1")
        A("v_add_f32_dpp v28, v28, v28 row_bcast:15 row_mask:0xa bank_mask:0xf")
        A("s_nop 1")
        A("v_add_f32_dpp v28, v28, v28 row_bcast:31 row_mask:0xc bank_mask:0xf")
        A("s_lshl_b32 s51, s25, 2")
        A(f"s_add_u32 s51, s51, {F2K}")
        A("v_mov_b32 v29, s51")
        A("s_mov_b64 s[44:45], exec")
        A("s_mov_b32 exec_lo, 0")
        A("s_mov_b32 exec_hi, 0x80000000")
        A("ds_write_b32 v29, v28")
        A("s_mov_b64 exec, s[44:45]")
        A("v_and_b32 v16, 15, v2")
        A("v_lshrrev_b32 v17, 4, v2")
        A("v_lshrrev_b32 v18, 2, v16")
        A("v_lshlrev_b32 v18, 3, v18")
        A("v_and_b32 v19, 3, v16")
        A("v_add_u32 v18, v18, v19")
        A("v_cvt_f32_u32 v18, v18")
        A("v_lshlrev_b32 v19, 5, v16")
        A("v_cvt_f32_u32 v19, v19")
        A("v_lshlrev_b32 v15, 7, v17")
        A("v_add_u32 v15, s50, v15")
        FA = 96
        for i in range(32): A(f"v_mov_b32 v{FA+i}, 0")
        PR = 32
        YA = 64
        XB = 72
        A("s_waitcnt lgkmcnt(0)")
        pk = getattr(A, "pk", 0)
        TY, TP, TE, TF, TT = 128, 136, 144, 160, 176
        def cmul4(dst, a, b):
            if pk:
                for m in range(4):
                    A(f"v_pk_mul_f32 {v(TT+2*m,2)}, {v(a(m),2)}, {v(b(m),2)} op_sel:[1,1] op_sel_hi:[1,0]")
                for m in range(4):
                    A(f"v_pk_fma_f32 {v(dst(m),2)}, {v(a(m),2)}, {v(b(m),2)}, {v(TT+2*m,2)} op_sel:[0,0,0] op_sel_hi:[0,1,1] neg_lo:[0,0,1]")
            else:
                for m in range(4):
                    A(f"v_mul_f32 v{TT+2*m}, v{a(m)+1}, v{b(m)+1}")
                    A(f"v_mul_f32 v{TT+2*m+1}, v{a(m)+1}, v{b(m)}")
                for m in range(4):
                    A(f"v_fma_f32 v{dst(m)}, v{a(m)}, v{b(m)}, -v{TT+2*m}")
                    A(f"v_fma_f32 v{dst(m)+1}, v{a(m)}, v{b(m)+1}, v{TT+2*m+1}")
        kloop = getattr(A, "kloop", 1)
        def rd_lo():
            for m in range(4): A(f"ds_read_b128 {v(PR+8*m,4)}, v15 offset:{m*32}")
        def rd_hi():
            for m in range(4): A(f"ds_read_b128 {v(PR+8*m+4,4)}, v15 offset:{m*32 + 16}")
        rd_lo(); rd_hi()
        A("s_and_b32 s48, s24, 7")
        for l in cnt_off("s47", "s48", CB_UT, "s49"): A(l)
        A("v_mov_b32 v192, s47")
        A("s_mov_b32 s47, 0")
        kl = A.label("kgen")
        if kloop: A(f"{kl}:")
        for ks in range(1 if kloop else 4):
            def signal():
                if not getattr(A, "mst", 0): stamp(A, 11)
                A("s_waitcnt vmcnt(0)")
                if not getattr(A, "mst", 0): stamp(A, 10)
                A("s_barrier")
                sk = A.label("sig")
                A("s_cmp_lg_u32 s25, 0")
                A(f"s_cbranch_scc1 {sk}")
                for l in cnt_off("s48", "s35", CB_UT, "s49"): A(l)
                A("v_mov_b32 v194, s48")
                A("v_mov_b32 v195, 1")
                A("s_mov_b64 s[44:45], exec")
                A("s_mov_b64 exec, 1")
                A("buffer_atomic_add v195, v194, s[60:63], 0 offen sc1")
                A("s_mov_b64 exec, s[44:45]")
                A(f"{sk}:")
            if not al: pass
            elif kloop:
                skp = A.label("nosig")
                A("s_cmp_lg_u32 s47, 1")
                A(f"s_cbranch_scc1 {skp}")
                signal()
                A(f"{skp}:")
            elif ks == 1: signal()
            if not al: pass
            elif kloop:
                skp = A.label("nopoll")
                A("s_cmp_lg_u32 s47, 3")
                A(f"s_cbranch_scc1 {skp}")
                A("buffer_load_dword v193, v192, s[60:63], 0 offen sc1")
                A(f"{skp}:")
            elif ks == 3:
                A("buffer_load_dword v193, v192, s[60:63], 0 offen sc1")
            A("v_add_u32 v15, 512, v15")
            A("s_waitcnt lgkmcnt(4)")
            P = lambda m: PR + 8*m
            for m in range(4):
                if pk:
                    A(f"v_pk_mul_f32 {v(TE+2*m,2)}, v[18:19], {v(P(m),2)} op_sel:[0,0] op_sel_hi:[0,1]")
                    A(f"v_pk_mul_f32 {v(TF+2*m,2)}, v[18:19], {v(P(m),2)} op_sel:[1,0] op_sel_hi:[1,1]")
                else:
                    A(f"v_mul_f32 v{TE+2*m}, v18, v{P(m)}")
                    A(f"v_mul_f32 v{TE+2*m+1}, v18, v{P(m)+1}")
                    A(f"v_mul_f32 v{TF+2*m}, v19, v{P(m)}")
                    A(f"v_mul_f32 v{TF+2*m+1}, v19, v{P(m)+1}")
            for T in (TE, TF):
                for m in range(4): A(f"v_fract_f32 v{T+2*m+1}, v{T+2*m+1}")
            for T, D in ((TF, TP), (TE, TY)):
                for m in range(4):
                    A(f"v_exp_f32 v{T+2*m}, v{T+2*m}")
                    A(f"v_cos_f32 v{D+2*m}, v{T+2*m+1}")
                    A(f"v_sin_f32 v{D+2*m+1}, v{T+2*m+1}")
            for T, D in ((TF, TP), (TE, TY)):
                for m in range(4):
                    if pk:
                        A(f"v_pk_mul_f32 {v(D+2*m,2)}, {v(D+2*m,2)}, {v(T+2*m,2)} op_sel:[0,0] op_sel_hi:[1,0]")
                    else:
                        A(f"v_mul_f32 v{D+2*m}, v{D+2*m}, v{T+2*m}")
                        A(f"v_mul_f32 v{D+2*m+1}, v{D+2*m+1}, v{T+2*m}")
            cmul4(lambda m: TF+2*m, lambda m: TP+2*m, lambda m: P(m)+2)
            rd_lo()
            A("s_waitcnt lgkmcnt(4)")
            for m in range(4): A(f"v_cvt_pk_bf16_f32 v{YA+m}, v{TY+2*m}, v{TY+2*m+1}")
            cmul4(lambda m: TE+2*m, lambda m: TY+2*m, lambda m: P(m)+6)
            cur, oth = TF, TP
            for m in range(4): A(f"v_cvt_pk_bf16_f32 v{YA+4+m}, v{TE+2*m}, v{TE+2*m+1}")
            for r in range(4):
                for m in range(4): A(f"v_cvt_pk_bf16_f32 v{XB+4*r+m}, v{cur+2*m}, -v{cur+2*m+1}")
                if r < 3:
                    cmul4(lambda m: oth+2*m, lambda m: cur+2*m, lambda m: P(m)+4)
                    cur, oth = oth, cur
                if r == 2: rd_hi()
            A("s_nop 1")
            for c in range(2):
                for r in range(4):
                    acc = FA + (c*4+r)*4
                    A(f"v_mfma_f32_16x16x32_bf16 {v(acc,4)}, {v(YA+4*c,4)}, {v(XB+4*r,4)}, {v(acc,4)}")
        if kloop:
            A("s_add_u32 s47, s47, 1")
            A("s_cmp_lt_u32 s47, 4")
            A(f"s_cbranch_scc1 {kl}")
    stamp(A, 4)
    if al:
        if not getattr(A, "mst", 0): stamp(A, 12)
        pl = A.label("poll"); pd = A.label("polled")
        A("s_mov_b32 s53, 0")
        A(f"{pl}:")
        A("s_waitcnt vmcnt(0)")
        A("v_readfirstlane_b32 s47, v193")
        A("s_cmp_ge_u32 s47, 32")
        A(f"s_cbranch_scc1 {pd}")
        A("s_add_u32 s53, s53, 1")
        A("s_cmp_ge_u32 s53, 0x40000")
        A(f"s_cbranch_scc1 {pd}")
        A("s_sleep 8")
        A("buffer_load_dword v193, v192, s[60:63], 0 offen sc1")
        A(f"s_branch {pl}")
        A(f"{pd}:")
        stamp(A, 2)
        A("s_lshl_b32 s47, s29, 12")
        A(f"s_add_u32 s47, s47, {WS_UT}")
        srd_off(A, 40, 4, 5, "s47", 4096)
        A("v_and_b32 v192, 127, v0")
        A("v_lshlrev_b32 v192, 5, v192")
        A("v_subrev_u32 v193, 8, v192")
        A("v_max_i32 v193, 0, v193")
        A(f"buffer_load_dwordx4 {v(W,4)}, v192, s[40:43], 0 offen sc1")
        A(f"buffer_load_dwordx4 {v(W+4,4)}, v192, s[40:43], 0 offen offset:16 sc1")
        A(f"buffer_load_dwordx2 {v(W+8,2)}, v193, s[40:43], 0 offen sc1")
    if kg:
        A("s_nop 7")
        A("v_lshlrev_b32 v14, 4, v2")
        A("s_lshl_b32 s54, s25, 12")
        A(f"s_add_u32 s54, s54, {RED}")
        A("v_add_u32 v15, s54, v14")
        A("s_xor_b32 s55, s25, 1")
        A("s_lshl_b32 s55, s55, 12")
        A(f"s_add_u32 s55, s55, {RED}")
        A("v_add_u32 v16, s55, v14")
        h1 = A.label("h1"); hd = A.label("hd")
        A("s_cmp_eq_u32 s28, 1")
        A(f"s_cbranch_scc1 {h1}")
        for c in range(2):
            for rr in range(2):
                A(f"ds_write_b128 v15, {v(FA+(c*4+2+rr)*4,4)} offset:{(c*2+rr)*1024}")
                if not getattr(A, "nomov", 0):
                    for k in range(4): A(f"v_mov_b32 v{64+(c*2+rr)*4+k}, v{FA+(c*4+rr)*4+k}")
        A(f"s_branch {hd}")
        A(f"{h1}:")
        for c in range(2):
            for rr in range(2):
                A(f"ds_write_b128 v15, {v(FA+(c*4+rr)*4,4)} offset:{(c*2+rr)*1024}")
                if not getattr(A, "nomov", 0):
                    for k in range(4): A(f"v_mov_b32 v{64+(c*2+rr)*4+k}, v{FA+(c*4+2+rr)*4+k}")
        A(f"{hd}:")
        A("s_waitcnt lgkmcnt(0)")
        A("s_barrier")
        for t in range(4): A(f"ds_read_b128 {v(80+4*t,4)}, v16 offset:{t*1024}")
        A("s_lshl_b32 s51, s27, 3")
        A(f"s_add_u32 s51, s51, {F2K}")
        A("v_mov_b32 v29, s51")
        A("ds_read_b64 v[30:31], v29")
        A("s_waitcnt lgkmcnt(0)")
        if getattr(A, "nomov", 0):
            h2 = A.label("fh2"); he = A.label("fhe")
            A("s_cmp_eq_u32 s28, 1")
            A(f"s_cbranch_scc1 {h2}")
            for hs, lab in ((0, None), (2, h2)):
                if lab: A(f"{lab}:")
                for c in range(2):
                    for rr in range(2):
                        for k in range(4): A(f"v_add_f32 v{64+(c*2+rr)*4+k}, v{FA+(c*4+hs+rr)*4+k}, v{80+(c*2+rr)*4+k}")
                if not lab: A(f"s_branch {he}")
            A(f"{he}:")
        else:
            for i in range(16): A(f"v_add_f32 v{64+i}, v{64+i}, v{80+i}")
        A("v_and_b32 v16, 15, v2")
        A("v_lshlrev_b32 v16, 6, v16")
        A("v_lshrrev_b32 v17, 4, v2")
        A("v_lshlrev_b32 v17, 4, v17")
        A("v_add_u32 v16, v16, v17")
        A(f"s_mul_i32 s56, s27, {FCH}")
        A("s_lshl_b32 s57, s28, 11")
        A("s_add_u32 s57, s57, s56")
        A(f"s_add_u32 s57, s57, {FB}")
        A("v_add_u32 v16, s57, v16")
        for rr in range(2):
            for c in range(2):
                t = 64 + (c*2+rr)*4
                A(f"v_cvt_pk_bf16_f32 v{32+rr*4+c*2}, v{t}, v{t+1}")
                A(f"v_cvt_pk_bf16_f32 v{32+rr*4+c*2+1}, v{t+2}, v{t+3}")
            A(f"ds_write_b128 v16, {v(32+rr*4,4)} offset:{rr*1024}")
        A("v_add_f32 v30, v30, v31")
        A("v_cvt_pk_bf16_f32 v30, v30, v30")
        A(f"s_add_u32 s56, s56, {FB+4096}")
        A("v_mov_b32 v29, s56")
        A("s_mov_b64 s[44:45], exec")
        A("s_mov_b64 exec, 1")
        A("ds_write_b16 v29, v30")
        A("s_mov_b64 exec, s[44:45]")
        if getattr(A, "uearly", 0) and al: ucopies()
        A("s_waitcnt lgkmcnt(0)")
        A("s_barrier")
        if getattr(A, "mst", 0): stamp(A, 11)
        gat2 = getattr(A, "gat2", 0) and al
        if gat2:
            def grd(e): A(f"ds_read_u16{'_d16_hi' if e % 2 else ''} v{(40 if e % 2 else 32)+e//2}, v{GA+e}")
            def gwr(k):
                A(f"v_or_b32 v{32+k}, v{32+k}, v{40+k}")
                A(f"ds_write_b32 v16, v{32+k} offset:{KB+512+512*k}")
            for e in range(12): grd(e)
            A("v_and_b32 v16, 127, v0")
            A("v_lshlrev_b32 v16, 2, v16")
            A("v_lshrrev_b32 v17, 7, v0")
            A(f"v_mul_u32_u24 v17, {KCH}, v17")
            A("v_add_u32 v16, v16, v17")
            A("s_waitcnt lgkmcnt(6)")
            for e in range(12, 16): grd(e)
            for k in range(3): gwr(k)
            A("s_waitcnt lgkmcnt(7)")
            for k in range(3, 6): gwr(k)
            A("s_waitcnt lgkmcnt(6)")
            for k in range(6, 8): gwr(k)
        else:
            for e in range(16):
                op = "ds_read_u16" if e % 2 == 0 else "ds_read_u16_d16_hi"
                A(f"{op} v{(32 if e % 2 == 0 else 40)+e//2}, v{GA+e}")
                if e == 11: A("s_waitcnt lgkmcnt(4)")
            A("v_and_b32 v16, 127, v0")
            A("v_lshlrev_b32 v16, 5, v16")
            A("v_lshrrev_b32 v17, 7, v0")
            A(f"v_mul_u32_u24 v17, {KCH}, v17")
            A("v_add_u32 v16, v16, v17")
            A("s_waitcnt lgkmcnt(0)")
            for k in range(8): A(f"v_or_b32 v{32+k}, v{32+k}, v{40+k}")
    if al and not gat2:
        A(f"ds_write_b128 v16, v[32:35] offset:{KB+512}")
        A(f"ds_write_b128 v16, v[36:39] offset:{KB+512+16}")
    if part == "kgen":
        A("s_lshl_b32 s47, s26, 12")
        A(f"s_add_u32 s47, s47, {WS_KX}")
        srd_off(A, 36, 4, 5, "s47", 8192)
        A("v_lshlrev_b32 v16, 5, v0")
        A("buffer_store_dwordx4 v[32:35], v16, s[36:39], 0 offen" + getattr(A, "hst", ""))
        A("buffer_store_dwordx4 v[36:39], v16, s[36:39], 0 offen offset:16" + getattr(A, "hst", ""))
    if part == "conv":
        A("s_waitcnt lgkmcnt(0)")
        A("s_lshl_b32 s47, s27, 4")
        A("s_lshr_b32 s33, s33, s47")
        A("s_lshl_b32 s33, s33, 16")
        A("s_lshl_b32 s54, s25, 12")
        A(f"s_add_u32 s54, s54, {RED}")
        A("s_xor_b32 s55, s25, 1")
        A("s_lshl_b32 s55, s55, 12")
        A(f"s_add_u32 s55, s55, {RED}")
    if cv:
        if not (getattr(A, "uearly", 0) and al): ucopies()
        if getattr(A, "cpro", 0) and al: conv_addr()
        A("s_waitcnt lgkmcnt(0)")
        A("s_barrier")
        stamp(A, 5)
        if getattr(A, "dump", False):
            dl = A.label("nodump")
            A("s_cmp_lg_u32 s24, 0")
            A(f"s_cbranch_scc1 {dl}")
            srd_off(A, 36, 4, 5, 0x2000000, 81920)
            A("v_lshlrev_b32 v14, 4, v0")
            for k in range(20):
                A(f"ds_read_b128 v[32:35], v14 offset:{k*4096}" if k < 16 else f"ds_read_b128 v[32:35], v13 offset:{(k-16)*4096}")
                if k == 15: A("v_add_u32 v13, 65536, v14")
                A("s_waitcnt lgkmcnt(0)")
                A(f"s_mov_b32 s58, {k*4096}")
                A("buffer_store_dwordx4 v[32:35], v14, s[36:39], s58 offen")
                A("s_waitcnt vmcnt(0)")
            A(f"{dl}:")
    if kg:
        if (getattr(A, "fused", 0) or getattr(A, "kb2", 0)) and getattr(A, "w2pf", 1):
            A(f"s_load_dwordx2 s[50:51], s[0:1], {KA['w2']}")
            A("s_lshr_b32 s48, s24, 3")
            A("s_mul_i32 s48, s48, 448")
            A("s_mul_i32 s49, s25, 112")
            A("s_add_u32 s48, s48, s49")
            A("s_lshl_b32 s48, s48, 7")
            A("v_min_u32 v196, 55, v2")
            A("v_lshlrev_b32 v196, 7, v196")
            A("s_waitcnt lgkmcnt(0)")
            srd(A, 36, 50, 51, 1792*1024)
            A("buffer_load_dword v197, v196, s[36:39], s48 offen")
            A("s_add_u32 s48, s48, 7168")
            A("buffer_load_dword v198, v196, s[36:39], s48 offen")
    if part == 'kgen':
        stamp(A, 7)
        A(f"s_branch {endlabel}")
        return
    if not (getattr(A, "cpro", 0) and al): conv_addr()
    CA = 32
    cpro = getattr(A, "cpro", 0)
    if not cpro:
        for i in range(32): A(f"v_mov_b32 v{CA+i}, 0")
    FS = 64
    def creads(rp, fs):
        b = FS + fs*64
        for sg in range(8):
            o = 4032 - 512*sg - 64*rp
            A(f"ds_read_b64 {v(b+4*sg,2)}, v19 offset:{o}")
            A(f"ds_read_b64 {v(b+4*sg+2,2)}, v19 offset:{o+8}")
            A(f"ds_read_b128 {v(b+32+4*sg,4)}, v18 offset:{192 + 512*sg - 64*rp}")
    def cmf(fs):
        b = FS + fs*64
        pairs = sorted([(sg, q) for q in range(8) for sg in range(q+1)], key=lambda p: (max(p[0], p[1]-p[0]), p[1]))
        return pairs, b
    def cread_list(rp, fs):
        b = FS + fs*64
        L = []
        for sg in range(8):
            o = 4032 - 512*sg - 64*rp
            L.append(f"ds_read_b64 {v(b+4*sg,2)}, v19 offset:{o}")
            L.append(f"ds_read_b64 {v(b+4*sg+2,2)}, v19 offset:{o+8}")
            L.append(f"ds_read_b128 {v(b+32+4*sg,4)}, v18 offset:{192 + 512*sg - 64*rp}")
        return L
    cpipe = getattr(A, "cpipe", 0)
    creads(0, 0)
    for rp in range(4):
        fs = rp % 2
        nxt = []
        if cpipe:
            pairs, b = cmf(fs)
            nxt = cread_list(rp+1, 1-fs) if rp + 1 < 4 else []
            if rp > 0: A("s_waitcnt lgkmcnt(0)")
        else:
            if rp + 1 < 4:
                creads(rp+1, 1-fs)
                A("s_waitcnt lgkmcnt(15)")
            pairs, b = cmf(fs)
            if rp + 1 >= 4: A("s_waitcnt lgkmcnt(0)")
        seen = set()
        X = []
        if getattr(A, "epre", 0) and rp == 3:
            for t in range(4): A(f"ds_read_b64 {v(200+2*t,2)}, v21 offset:{1536 - 512*t}")
            for t in range(4):
                u0, u1, d = 200+2*t, 201+2*t, 216+4*t
                X += [f"v_and_b32 v{d}, s46, v{u1}", f"v_lshlrev_b32 v{d+1}, 16, v{u1}", f"v_and_b32 v{d+2}, s46, v{u0}", f"v_lshlrev_b32 v{d+3}, 16, v{u0}"]
            for i in range(16): X.append(f"v_mul_f32 v{216+i}, s33, v{216+i}")
            for i in range(16): X.append(f"v_cvt_pk_bf16_f32 v{216+i}, 0, v{216+i}")
        for n, (sg, q) in enumerate(pairs):
            cin = v(CA+4*q,4)
            if cpro and rp == 0 and q not in seen: cin = "0"
            seen.add(q)
            if cpipe and rp == 0 and n == 0: A("s_waitcnt lgkmcnt(0)")
            A(f"v_mfma_f32_16x16x32_bf16 {v(CA+4*q,4)}, {v(b+4*sg,4)}, {v(b+32+4*(q-sg),4)}, {cin}")
            if cpipe and n < len(nxt): A(nxt[n])
            if X and n == 8: A("s_waitcnt lgkmcnt(0)")
            if X and n >= 9:
                for x in X[2*(n-9):2*(n-9)+2]: A(x)
    stamp(A, 6)
    A("s_nop 7")
    A("v_lshlrev_b32 v14, 4, v2")
    A("v_add_u32 v15, s54, v14")
    A("v_add_u32 v16, s55, v14")
    h1 = A.label("h1"); hd = A.label("hd")
    A("s_cmp_eq_u32 s28, 1")
    A(f"s_cbranch_scc1 {h1}")
    nomov = getattr(A, "nomov", 0)
    for t in range(4):
        A(f"ds_write_b128 v15, {v(CA+16+4*t,4)} offset:{t*1024}")
        if not nomov:
            for k in range(4): A(f"v_mov_b32 v{64+4*t+k}, v{CA+4*t+k}")
    A(f"s_branch {hd}")
    A(f"{h1}:")
    for t in range(4):
        A(f"ds_write_b128 v15, {v(CA+4*t,4)} offset:{t*1024}")
        if not nomov:
            for k in range(4): A(f"v_mov_b32 v{64+4*t+k}, v{CA+16+4*t+k}")
    A(f"{hd}:")
    A("s_waitcnt lgkmcnt(0)")
    A("s_barrier")
    for t in range(4): A(f"ds_read_b128 {v(80+4*t,4)}, v16 offset:{t*1024}")
    epre = getattr(A, "epre", 0)
    if not epre:
        A("v_and_b32 v16, 15, v2")
        A("v_lshrrev_b32 v17, 4, v2")
        A("v_lshlrev_b32 v20, 5, v16")
        A("v_lshlrev_b32 v21, 3, v17")
        A("v_add_u32 v20, v20, v21")
        A(f"s_mul_i32 s56, s27, {UCH}")
        A("s_lshl_b32 s57, s28, 11")
        A("s_sub_u32 s56, s56, s57")
        A(f"s_add_u32 s56, s56, {UB + 4088 - 1536}")
        A("v_sub_u32 v21, s56, v20")
        for t in range(4): A(f"ds_read_b64 {v(100+2*t,2)}, v21 offset:{1536 - 512*t}")
    A("s_waitcnt lgkmcnt(0)")
    A("v_mov_b32 v22, s33")
    if nomov:
        h2 = A.label("h2"); he = A.label("he")
        A("s_cmp_eq_u32 s28, 1")
        A(f"s_cbranch_scc1 {h2}")
        for i in range(16): A(f"v_add_f32 v{64+i}, v{CA+i}, v{80+i}")
        A(f"s_branch {he}")
        A(f"{h2}:")
        for i in range(16): A(f"v_add_f32 v{64+i}, v{CA+16+i}, v{80+i}")
        A(f"{he}:")
    for t in range(4):
        if not nomov:
            for k in range(4): A(f"v_add_f32 v{64+4*t+k}, v{64+4*t+k}, v{80+4*t+k}")
        y = 64 + 4*t
        cvz = getattr(A, "cvz", 0)
        if cvz:
            for k in range(4): A(f"v_cvt_pk_bf16_f32 v{y+k}, 0, v{y+k}")
        else:
            A(f"v_cvt_pk_bf16_f32 v24, v{y}, v{y+1}")
            A(f"v_cvt_pk_bf16_f32 v25, v{y+2}, v{y+3}")
            A(f"v_lshlrev_b32 v{y}, 16, v24")
            A(f"v_and_b32 v{y+1}, s46, v24")
            A(f"v_lshlrev_b32 v{y+2}, 16, v25")
            A(f"v_and_b32 v{y+3}, s46, v25")
        if epre:
            for k in range(4): A(f"v_add_f32 v{26+k}, v{216+4*t+k}, v{y+k}")
        else:
            u0, u1 = 100+2*t, 101+2*t
            A(f"v_and_b32 v26, s46, v{u1}")
            A(f"v_lshlrev_b32 v27, 16, v{u1}")
            A(f"v_and_b32 v28, s46, v{u0}")
            A(f"v_lshlrev_b32 v29, 16, v{u0}")
            for k in range(4): A(f"v_mul_f32 v{26+k}, v{26+k}, v22")
            if cvz:
                for k in range(4): A(f"v_cvt_pk_bf16_f32 v{26+k}, 0, v{26+k}")
            else:
                A("v_cvt_pk_bf16_f32 v24, v26, v27")
                A("v_cvt_pk_bf16_f32 v25, v28, v29")
                A("v_lshlrev_b32 v26, 16, v24")
                A("v_and_b32 v27, s46, v24")
                A("v_lshlrev_b32 v28, 16, v25")
                A("v_and_b32 v29, s46, v25")
            for k in range(4): A(f"v_add_f32 v{26+k}, v{26+k}, v{y+k}")
        A(f"v_cvt_pk_bf16_f32 v{112+2*t}, v26, v27")
        A(f"v_cvt_pk_bf16_f32 v{113+2*t}, v28, v29")
    A("s_lshl_b32 s56, s29, 12")
    A("s_lshl_b32 s57, s28, 11")
    A("s_add_u32 s56, s56, s57")
    A(f"s_add_u32 s56, s56, {WS_AT}")
    srd_off(A, 36, 4, 5, "s56", 2048)
    for t in range(4):
        A(f"buffer_store_dwordx2 {v(112+2*t,2)}, v20, s[36:39], 0 offen offset:{512*t}" + getattr(A, "hst", ""))
    stamp(A, 7)
    if getattr(A, "fused", 0) or part == "conv":
        sig2(A, ["s_and_b32 s48, s24, 7"] + cnt_off("s47", "s48", CB_AT, "s49"), "s25", 60, tmp=16)
    A(f"s_branch {endlabel}")
```

```python
from asmlib import *

def gen_kb(A, name="kb_kernel"):
    NSET = getattr(A, 'nset', 4)
    kernel_header(A, name)
    end = A.label("kb_end")
    A("s_cmp_ge_u32 s2, 256")
    A(f"s_cbranch_scc1 {end}")
    stamp(A, 0, real=True); stamp(A, 1)
    A(f"s_load_dwordx2 s[4:5], s[0:1], {KA['ws']}")
    A(f"s_load_dwordx2 s[6:7], s[0:1], {KA['out']}")
    A("v_lshrrev_b32 v1, 6, v0")
    A("v_and_b32 v2, 63, v0")
    A("s_and_b32 s8, s2, 7")
    A("v_readfirstlane_b32 s9, v1")
    A("s_lshr_b32 s10, s2, 3")
    A("s_and_b32 s11, s10, 3")
    A("s_lshl_b32 s8, s8, 2")
    A("s_add_u32 s8, s8, s11")
    A("s_lshr_b32 s10, s10, 2")
    A("v_lshlrev_b32 v3, 4, v2")
    A("s_mul_i32 s12, s9, 14")
    A("s_mul_i32 s13, s8, 56")
    A("s_add_u32 s13, s13, s12")
    A("s_lshl_b32 s13, s13, 12")
    A("s_mul_i32 s14, s10, 56")
    A("s_add_u32 s14, s14, s12")
    A("s_lshl_b32 s14, s14, 12")
    A(f"s_add_u32 s14, s14, {WS_W2F}")
    A("v_lshrrev_b32 v4, 3, v2")
    A("v_lshlrev_b32 v4, 12, v4")
    A("v_and_b32 v5, 7, v2")
    A("v_lshlrev_b32 v5, 4, v5")
    A("v_add_u32 v4, v4, v5")
    A("s_lshl_b32 s15, s10, 6")
    A("s_lshl_b32 s16, s9, 4")
    A("s_add_u32 s15, s15, s16")
    A("s_lshl_b32 s15, s15, 12")
    A("s_lshl_b32 s16, s8, 7")
    A("s_add_u32 s15, s15, s16")
    A(f"s_add_u32 s15, s15, {WS_AT}")
    A("v_and_b32 v5, 15, v2")
    A("v_lshlrev_b32 v6, 2, v5")
    A("s_lshl_b32 s17, s8, 8")
    A("s_lshl_b32 s18, s9, 6")
    A("s_add_u32 s17, s17, s18")
    A(f"s_add_u32 s17, s17, {WS_G}")
    A("s_waitcnt lgkmcnt(0)")
    srd_off(A, 20, 4, 5, "s13", 14*4096)
    srd_off(A, 24, 4, 5, "s14", 14*4096)
    srd_off(A, 28, 4, 5, "s15", 16*4096)
    srd_off(A, 32, 4, 5, "s17", 64)
    def at_loads():
        A("s_lshl_b32 s19, s9, 11")
        A("s_add_u32 s19, s19, 65536")
        A("s_mov_b32 m0, s19")
        A("s_mov_b32 s36, 32768")
        A("buffer_load_dwordx4 v4, s[28:31], 0 offen lds")
        A("s_add_u32 s19, s19, 1024")
        A("s_mov_b32 m0, s19")
        A("s_nop 0")
        A("buffer_load_dwordx4 v4, s[28:31], s36 offen lds")
        A("buffer_load_dword v7, v6, s[32:35], 0 offen")
    alate = getattr(A, "alate", 0)
    if not alate: at_loads()
    def st_addr():
        A("v_and_b32 v5, 15, v2")
        A("v_lshlrev_b32 v5, 10, v5")
        A("v_lshrrev_b32 v12, 4, v2")
        A("v_lshlrev_b32 v12, 4, v12")
        A("v_add_u32 v5, v5, v12")
        A("s_lshl_b32 s42, s8, 16")
        A("s_lshl_b32 s43, s9, 14")
        A("s_add_u32 s42, s42, s43")
        A("s_lshl_b32 s43, s10, 7")
        A("s_add_u32 s42, s42, s43")
        srd(A, 44, 6, 7, 2048*1024)
    SET0 = 8
    def setreg(k, i): return SET0 + (k % NSET) * 32 + i * 4
    def issue_list(step):
        L = []
        for i in range(4):
            L.append(f"buffer_load_dwordx4 {v(setreg(step, i),4)}, v3, s[24:27], s{48+step%2} offen offset:{i*1024}")
            L.append(f"buffer_load_dwordx4 {v(setreg(step, 4+i),4)}, v3, s[20:23], s{48+step%2} offen offset:{i*1024}")
        if getattr(A, "brot", None) is not None:
            return [f"s_mov_b32 s{48+step%2}, s50", "s_add_u32 s50, s50, 4096", f"s_cmp_ge_u32 s50, {14*4096}", "s_cselect_b32 s50, 0, s50"], L
        return [f"s_mov_b32 s{48+step%2}, {step*4096}"], L
    if getattr(A, "brot", None) is not None:
        md, ml = divmod(A.brot, 10)
        A(f"s_mul_i32 s50, s10, {md}")
        A(f"s_mul_i32 s51, s11, {ml}")
        A("s_add_u32 s50, s50, s51")
        for _ in range((7*md + 3*ml) // 14):
            A("s_sub_u32 s51, s50, 14")
            A("s_cmp_ge_u32 s50, 14")
            A("s_cselect_b32 s50, s51, s50")
        A("s_lshl_b32 s50, s50, 12")
    for st in range(NSET-1):
        su, L = issue_list(st)
        for l in su + L: A(l)
    if alate: at_loads()
    bpre = getattr(A, "bpre", 0)
    if bpre:
        assert NSET == 3
        A("v_lshrrev_b32 v129, 4, v2")
        A("v_lshlrev_b32 v128, 10, v129")
        A("v_lshrrev_b32 v129, 2, v2")
        A("v_and_b32 v129, 3, v129")
        A("v_lshlrev_b32 v129, 7, v129")
        A("v_add_u32 v128, v128, v129")
        A("v_and_b32 v129, 3, v2")
        A("v_lshlrev_b32 v129, 3, v129")
        A("v_add_u32 v128, v128, v129")
        A("s_lshl_b32 s38, s9, 5")
        A("s_add_u32 s38, s38, 65536")
        A("v_add_u32 v128, s38, v128")
        A("s_mov_b32 s40, 0xffff0000")
    for i in range(64): A(f"v_accvgpr_write_b32 a{i}, 0")
    for st in range(14):
        last = min(st + NSET - 2, 13)
        A(f"s_waitcnt vmcnt({8*(last-st) + (3 if alate and st < NSET-1 else 0)})")
        if st == 0: stamp(A, 2)
        if st == 7: stamp(A, 3)
        nx = st + NSET - 1
        su, L = issue_list(nx) if nx < 14 else ([], [])
        for l in su: A(l)
        X = []
        if bpre and st == 3:
            A("s_barrier")
            for dt in range(4):
                A(f"ds_read_b64_tr_b16 {v(120+dt*2,2)}, v128 offset:{(dt>>1)*4096 + (dt&1)*512}")
        if bpre and st == 5:
            A("s_waitcnt lgkmcnt(0)")
            for p in range(8):
                X += [f"v_lshlrev_b32 v{104+2*p}, 16, v{120+p}", f"v_and_b32 v{105+2*p}, s40, v{120+p}"]
            for p in range(16): X.append(f"v_mul_f32 v{104+p}, v7, v{104+p}")
            for p in range(16): X.append(f"v_cvt_pk_bf16_f32 v{104+p}, 0, v{104+p}")
        k = 0
        for dt in range(4):
            for lt in range(4):
                acc = (dt*4 + lt)*4
                A(f"v_mfma_f32_16x16x32_bf16 {a_(acc,4)}, {v(setreg(st,dt),4)}, {v(setreg(st,4+lt),4)}, {a_(acc,4)}")
                if k % 2 == 0 and L: A(L[k//2])
                for x in X[3*k:3*k+3]: A(x)
                k += 1
    stamp(A, 4)
    A("s_nop 7")
    A("s_nop 1")
    A("s_lshl_b32 s38, s9, 12")
    A("v_add_u32 v8, s38, v3")
    for lt in range(4):
        skip = A.label("skipw")
        A(f"s_cmp_eq_u32 s9, {lt}")
        A(f"s_cbranch_scc1 {skip}")
        for dt in range(4):
            acc = (dt*4 + lt)*4
            A(f"ds_write_b128 v8, {a_(acc,4)} offset:{lt*16384 + dt*1024}")
        A(f"{skip}:")
    for lt in range(4):
        skip = A.label("skipo")
        A(f"s_cmp_lg_u32 s9, {lt}")
        A(f"s_cbranch_scc1 {skip}")
        for dt in range(4):
            for r in range(4):
                A(f"v_accvgpr_read_b32 v{16+dt*4+r}, a{(dt*4+lt)*4+r}")
        A(f"{skip}:")
    if bpre: st_addr()
    A("s_waitcnt vmcnt(0) lgkmcnt(0)")
    A("s_barrier")
    A("s_lshl_b32 s38, s9, 14")
    A("v_add_u32 v8, s38, v3")
    for q in range(1, 4):
        A(f"s_add_u32 s39, s9, {q}")
        A("s_and_b32 s39, s39, 3")
        A("s_lshl_b32 s39, s39, 12")
        A(f"v_add_u32 v{8+q}, s39, v8")
    for q in range(1, 4):
        for dt in range(4):
            A(f"ds_read_b128 {v(32+(q-1)*16+dt*4,4)}, v{8+q} offset:{dt*1024}")
    if not bpre:
        A("v_lshrrev_b32 v12, 4, v2")
        A("v_lshlrev_b32 v13, 10, v12")
        A("v_lshrrev_b32 v14, 2, v2")
        A("v_and_b32 v14, 3, v14")
        A("v_lshlrev_b32 v14, 7, v14")
        A("v_add_u32 v13, v13, v14")
        A("v_and_b32 v14, 3, v2")
        A("v_lshlrev_b32 v14, 3, v14")
        A("v_add_u32 v13, v13, v14")
        A("s_lshl_b32 s38, s9, 5")
        A("s_add_u32 s38, s38, 65536")
        A("v_add_u32 v13, s38, v13")
        for dt in range(4):
            A(f"ds_read_b64_tr_b16 {v(80+dt*2,2)}, v13 offset:{(dt>>1)*4096 + (dt&1)*512}")
    if not bpre: A("s_waitcnt lgkmcnt(4)")
    for q in range(3):
        if bpre: A(f"s_waitcnt lgkmcnt({8-4*q})")
        for i in range(16):
            A(f"v_add_f32 v{16+i}, v{16+i}, v{32+q*16+i}")
    A("v_sub_f32 v8, 1.0, v7")
    A("v_cvt_pk_bf16_f32 v8, v8, v8")
    A("v_and_b32 v8, 0xffff0000, v8")
    A("s_waitcnt lgkmcnt(0)")
    A("s_mov_b32 s40, 0xffff0000")
    cvz = getattr(A, "cvz", 0)
    for p in range(8):
        b0, b1 = 16+2*p, 17+2*p
        if cvz:
            A(f"v_cvt_pk_bf16_f32 v{b0}, 0, v{b0}")
            A(f"v_cvt_pk_bf16_f32 v{b1}, 0, v{b1}")
        else:
            A(f"v_cvt_pk_bf16_f32 v9, v{b0}, v{b1}")
            A(f"v_lshlrev_b32 v{b0}, 16, v9")
            A(f"v_and_b32 v{b1}, s40, v9")
        if bpre:
            A(f"v_mul_f32 v{b0}, v8, v{b0}")
            A(f"v_mul_f32 v{b1}, v8, v{b1}")
            A(f"v_cvt_pk_bf16_f32 v{b0}, 0, v{b0}")
            A(f"v_cvt_pk_bf16_f32 v{b1}, 0, v{b1}")
            A(f"v_add_f32 v{b0}, v{104+2*p}, v{b0}")
            A(f"v_add_f32 v{b1}, v{105+2*p}, v{b1}")
            A(f"v_cvt_pk_bf16_f32 v{88+p}, v{b0}, v{b1}")
            continue
        A(f"v_lshlrev_b32 v10, 16, v{80+p}")
        A(f"v_and_b32 v11, s40, v{80+p}")
        A(f"v_mul_f32 v10, v7, v10")
        A(f"v_mul_f32 v11, v7, v11")
        A(f"v_mul_f32 v{b0}, v8, v{b0}")
        A(f"v_mul_f32 v{b1}, v8, v{b1}")
        if cvz:
            for r in (10, 11, b0, b1): A(f"v_cvt_pk_bf16_f32 v{r}, 0, v{r}")
        else:
            A(f"v_cvt_pk_bf16_f32 v9, v10, v11")
            A(f"v_cvt_pk_bf16_f32 v12, v{b0}, v{b1}")
            A(f"v_lshlrev_b32 v10, 16, v9")
            A(f"v_and_b32 v11, s40, v9")
            A(f"v_lshlrev_b32 v{b0}, 16, v12")
            A(f"v_and_b32 v{b1}, s40, v12")
        A(f"v_add_f32 v10, v10, v{b0}")
        A(f"v_add_f32 v11, v11, v{b1}")
        A(f"v_cvt_pk_bf16_f32 v{88+p}, v10, v11")
    if not bpre: st_addr()
    ost = getattr(A, "ost", "")
    A("buffer_store_dwordx4 v[88:91], v5, s[44:47], s42 offen" + ost)
    A("buffer_store_dwordx4 v[92:95], v5, s[44:47], s42 offen offset:64" + ost)
    if getattr(A, "stamps", False):
        A("s_waitcnt vmcnt(0)")
        stamp(A, 5); stamp(A, 6, real=True)
        stamp_flush(A, 7, "s4", "s5", wave_sgpr="s9", base=0x20000)
    A(f"{end}:")
    A("s_endpgm")
    return dict(name=name, vgpr=256+64, accum=256)
```
